```python
import torch

def _softmax(x, axis=-1):
    return torch.softmax(x, dim=axis)
def _gelu(x):
    return torch.nn.functional.gelu(x, approximate="tanh")
def _silu(x):
    return torch.nn.functional.silu(x)
def _sigmoid(x):
    return torch.sigmoid(x)
def _layernorm(x, axis=-1, eps=1e-5):
    m = x.mean(dim=axis, keepdim=True)
    v = x.var(dim=axis, keepdim=True, unbiased=False)
    return (x - m) / torch.sqrt(v + eps)
def _scatter_add(tgt, idx, src, axis=0):
    return tgt.clone().index_add_(axis, idx, src)
def _segment_sum(src, seg, n):
    out = torch.zeros((n,) + src.shape[1:], dtype=src.dtype)
    return out.index_add_(0, seg, src)
def _pad(x, pw):
    flat = tuple(v for pair in reversed(pw) for v in pair)
    return torch.nn.functional.pad(x, flat)

kernel_name = 'parallel_sum__sliding_block_cached__dense_activation_gelu__decode'

def setup_inputs():

    _w = (lambda a: (lambda t: t.to(torch.bfloat16) if t.is_floating_point() else t)(torch.as_tensor(a)))
    def _A_setup():
        B, Sq, D = 1, 1, 640
        Hq, Hkv, Sk, Dh = 32, 32, 8192, 128
        assert Hq % Hkv == 0, (Hq, Hkv)
        return {
            "x": _w((lambda *s: torch.randn(*s, dtype=torch.bfloat16) * 0.05)(B, Sq, D)),
            "k_cache": _w((lambda *s: torch.randn(*s, dtype=torch.bfloat16) * 3.2)(B, Hkv, Sk, Dh)),
            "v_cache": _w((lambda *s: torch.randn(*s, dtype=torch.bfloat16) * 0.8)(B, Hkv, Sk, Dh)),
            "wq": _w((lambda *s: torch.randn(*s, dtype=torch.bfloat16) * 3.2)(D, Hq * Dh) * (D ** -0.5)),
            "wo": _w((lambda *s: torch.randn(*s, dtype=torch.bfloat16) * 0.8)(Hq * Dh, D) * ((Hq * Dh) ** -0.5)),
        }
    _A_in = _A_setup()

    def _B_setup():
        B, S, D, F = 1, 1, 640, 1728
        return {
            "x": _w((lambda *s: torch.randn(*s, dtype=torch.bfloat16) * 0.05)(B, S, D)),
            "w1": _w((lambda *s: torch.randn(*s, dtype=torch.bfloat16) * 0.8)(D, F) * (D ** -0.5)),
            "b1": _w((lambda *s: torch.randn(*s, dtype=torch.bfloat16) * 0.8)(F) * 0.01),
            "w2": _w((lambda *s: torch.randn(*s, dtype=torch.bfloat16) * 0.8)(F, D) * (F ** -0.5)),
            "b2": _w((lambda *s: torch.randn(*s, dtype=torch.bfloat16) * 0.8)(D) * 0.01),
        }
    _B_in = _B_setup()

    return {
        "A_x": _A_in["x"],
        "A_k_cache": _A_in["k_cache"],
        "A_v_cache": _A_in["v_cache"],
        "A_wq": _A_in["wq"],
        "A_wo": _A_in["wo"],
        "B_x": _B_in["x"],
        "B_w1": _B_in["w1"],
        "B_b1": _B_in["b1"],
        "B_w2": _B_in["w2"],
        "B_b2": _B_in["b2"],
    }

def reference(A_x, A_k_cache, A_v_cache, A_wq, A_wo, B_x, B_w1, B_b1, B_w2, B_b2):
    def _A_ref(x, k_cache, v_cache, wq, wo):
        B, Sq, D = x.shape
        Hq, Dh = 32, 128
        Hkv, Sk = k_cache.shape[1], k_cache.shape[2]
        W = min(4096, max(256, Sk // 4))
        rep = Hq // Hkv
        q = (lambda x, *d: x.permute(*d))((x @ wq).reshape(B, Sq, Hq, Dh), 0, 2, 1, 3)
        k = (lambda x, n, axis: torch.repeat_interleave(x, n, dim=axis))(k_cache[:, :, Sk - W:, :], rep, axis=1)
        v = (lambda x, n, axis: torch.repeat_interleave(x, n, dim=axis))(v_cache[:, :, Sk - W:, :], rep, axis=1)
        scores = torch.einsum("bhqd,bhkd->bhqk", q, k) * (Dh ** -0.5)
        p = _softmax(scores, axis=-1)
        o = torch.einsum("bhqk,bhkd->bhqd", p, v)
        return (lambda x, *d: x.permute(*d))(o, 0, 2, 1, 3).reshape(B, Sq, Hq * Dh) @ wo

    def _B_ref(x, w1, b1, w2, b2):
        h = torch.einsum("bsd,df->bsf", x, w1) + b1
        h = _gelu(h)
        return torch.einsum("bsf,fd->bsd", h, w2) + b2

    x = A_x
    xn = _layernorm(x, axis=-1)
    return x + _A_ref(xn, A_k_cache, A_v_cache, A_wq, A_wo) + _B_ref(xn, B_w1, B_b1, B_w2, B_b2)
```

```python
NAME = "parallel_sum__sliding_block_cached__dense_activation_gelu__decode"
HDR_COMMENT = open("cdna_kernels/%s.s.ref" % NAME).read().split("; Override launch")[0]

class Asm:
    def __init__(self):
        self.l = []
    def __call__(self, s):
        for line in s.strip("\n").split("\n"):
            self.l.append("    " + line.strip() if not line.strip().endswith(":") else line.strip())
    def text(self):
        return "\n".join(self.l) + "\n"

def wrap(body, grid, block, lds, vgpr, sgpr=102, accum=None):
    if accum is None:
        accum = (vgpr + 3) // 4 * 4
        if accum > 256: accum = 256
    return (HDR_COMMENT +
        "; @launch grid=(%d,1,1) block=(%d,1,1) lds=%d\n" % (grid, block, lds) +
        '.amdgcn_target "amdgcn-amd-amdhsa--gfx950"\n.text\n.globl %s_kernel\n.p2align 8\n.type %s_kernel,@function\n%s_kernel:\n' % (NAME, NAME, NAME) +
        body +
        '.section .rodata,"a"\n.p2align 6\n.amdhsa_kernel %s_kernel\n' % NAME +
        "  .amdhsa_next_free_vgpr %d\n  .amdhsa_next_free_sgpr %d\n  .amdhsa_accum_offset %d\n" % (vgpr, sgpr, accum) +
        "  .amdhsa_group_segment_fixed_size 0\n  .amdhsa_kernarg_size 104\n  .amdhsa_user_sgpr_count 2\n"
        "  .amdhsa_user_sgpr_kernarg_segment_ptr 1\n  .amdhsa_system_sgpr_workgroup_id_x 1\n.end_amdhsa_kernel\n")
```

```python
import re, sys

def regs(tok):
    tok = tok.strip().lstrip('-').strip('|')
    m = re.fullmatch(r'([vs])(\d+)', tok)
    if m: return {(m.group(1), int(m.group(2)))}
    m = re.fullmatch(r'([vs])\[(\d+):(\d+)\]', tok)
    if m: return {(m.group(1), i) for i in range(int(m.group(2)), int(m.group(3)) + 1)}
    if tok == 'vcc': return {('s', 'vcc')}
    if tok in ('exec', 'exec_lo', 'exec_hi'): return {('s', 'exec')}
    return set()

TRANS = ('v_exp_f32', 'v_log_f32', 'v_rcp_f32', 'v_rsq_f32', 'v_sqrt_f32', 'v_sin_f32', 'v_cos_f32')

def parse(line):
    line = line.split(';')[0].strip()
    if not line or line.endswith(':') or line.startswith('.'): return None
    parts = line.split(None, 1)
    op = parts[0]
    rest = parts[1] if len(parts) > 1 else ''
    ops = [o.strip() for o in re.split(r',\s*(?![^\[]*\])', rest)]
    mods = ''
    if ops:
        sp = ops[-1].split(None, 1)
        if len(sp) > 1:
            ops[-1] = sp[0]; mods = sp[1]
    d = dict(op=op, ops=ops, mods=mods, line=line)
    isv = op.startswith('v_')
    d['valu'] = isv and not op.startswith('v_mfma')
    d['mfma'] = op.startswith('v_mfma')
    d['dpp'] = '_dpp' in op
    d['perm'] = op.startswith('v_permlane')
    d['trans'] = any(op.startswith(t) for t in TRANS)
    d['vmem'] = op.startswith(('buffer_', 'global_'))
    d['ds'] = op.startswith('ds_')
    w, r = set(), set()
    if isv:
        if op.startswith('v_cmp'):
            w |= regs(ops[0]); [r.update(regs(o)) for o in ops[1:]]
        elif d['perm']:
            w |= regs(ops[0]) | regs(ops[1]); r |= regs(ops[0]) | regs(ops[1])
        else:
            w |= regs(ops[0]); [r.update(regs(o)) for o in ops[1:]]
            if op.startswith(('v_fmac', 'v_dot2c')) or d['dpp']: r |= regs(ops[0])
            if op.startswith('v_cndmask') and len(ops) == 3: r.add(('s', 'vcc'))
    elif d['vmem']:
        if 'load' in op and 'lds' not in mods:
            w |= regs(ops[0]); [r.update(regs(o)) for o in ops[1:]]
        else:
            [r.update(regs(o)) for o in ops]
    elif d['ds']:
        if op.startswith(('ds_read', 'ds_bperm', 'ds_swizzle', 'ds_perm')):
            w |= regs(ops[0]); [r.update(regs(o)) for o in ops[1:]]
        else:
            [r.update(regs(o)) for o in ops]
    elif op.startswith('s_'):
        if not op.startswith(('s_cmp', 's_cbranch', 's_branch', 's_waitcnt', 's_nop', 's_barrier', 's_endpgm', 's_setprio', 's_sleep')):
            w |= regs(ops[0]); [r.update(regs(o)) for o in ops[1:]]
        else:
            [r.update(regs(o)) for o in ops]
    d['w'], d['r'] = w, r
    d['states'] = (int(ops[0], 0) + 1) if op == 's_nop' else 1
    return d

def check(text):
    ins = []
    for ln, line in enumerate(text.split('\n'), 1):
        d = parse(line)
        if d: d['ln'] = ln; ins.append(d)
    errs = []
    for i, c in enumerate(ins):
        dist = 0
        for j in range(i - 1, max(-1, i - 24), -1):
            p = ins[j]
            def need(n, why):
                if dist < n: errs.append("line %d: '%s' needs %d states after line %d '%s' (has %d): %s" % (c['ln'], c['line'], n, p['ln'], p['line'], dist, why))
            vw = {x for x in p['w'] if x[0] == 'v'}
            sw = {x for x in p['w'] if x[0] == 's'}
            if p['valu']:
                if c['dpp'] and vw & c['r']: need(2, 'VALU->DPP')
                if c['perm'] and vw & c['r']: need(2, 'VALU->permlane')
                if c['mfma'] and vw & c['r']: need(2, 'VALU->MFMA')
                if c['op'].startswith(('v_readlane', 'v_readfirstlane')) and vw & c['r']: need(1, 'VALU->readlane')
                if p['trans'] and c['valu'] and not c['trans'] and vw & c['r']: need(1, 'trans->VALU')
                if p['trans'] and c['mfma'] and vw & c['r']: need(2, 'trans->mfma')
                if sw and (c['valu'] or c['mfma']) and sw & c['r']: need(2, 'VALU sgpr->VALU const')
                if sw and c['vmem'] and sw & c['r']: need(5, 'VALU sgpr->VMEM')
                if sw and c['op'].startswith('s_') and sw & c['r'] and not c['op'].startswith('s_cbranch'): need(1, 'VALU sgpr->SALU (pad)')
            if p['mfma']:
                D = p['w']
                npass = 4 if '16x16x32' in p['op'] else 8
                big = {4: 8, 8: 12}[npass]
                if (c['valu'] or c['vmem'] or c['ds']) and D & (c['r'] | c['w']): need(big, 'MFMA D->VALU/mem')
                if c['mfma']:
                    a = regs(c['ops'][1]) | regs(c['ops'][2]); cc = regs(c['ops'][3])
                    if D & a: need(big, 'MFMA D->MFMA A/B')
                    if D & cc and cc != D: need(big - 2, 'MFMA D->C overlap')
                    if D & c['w'] and not (D & cc): need(big, 'MFMA WAW?')
                srcC = regs(p['ops'][3])
                if c['valu'] and srcC & c['w']: need({4: 3, 8: 7}[npass], 'MFMA C WAR')
            if p['vmem'] and 'store' in p['op'] and ('x4' in p['op'] or 'x3' in p['op']):
                if c['valu'] and regs(p['ops'][0]) & c['w']: need(2, 'store data WAR')
            dist += p['states']
            if dist >= 20: break
    return errs

if __name__ == '__main__':
    e = check(open(sys.argv[1]).read())
    print("\n".join(e) if e else "hazard check clean")
```

```python
import sys, struct
from glib import *
import hazard

def f32(x):
    return "0x%08x" % struct.unpack("<I", struct.pack("<f", x))[0]

WS_EPOCH = 0
WS_ML = 0x1000
WS_O = 0x10000
WS_H = 0x50000
WS_F = 0x90000
WS_ST = 0x8000000
U_XN, U_QP, U_HP, U_OP, U_FP, U_MISC = 0, 5, 13, 21, 29, 37
L_QB = U_MISC * 512
L_MX = L_QB + 256
L_LS = L_QB + 272
LDS_BYTES = L_QB + 512
OOB = 0x7ff00000

def gen(stamps=False, prefetch=True, codekb=6):
    a = Asm()
    nst = [0]
    def stamp(k):
        if stamps: a("s_memrealtime s[%d:%d]" % (72 + 2 * k, 73 + 2 * k))
    X, K, V, WQ, W2, W1, B1, B2, OUT, WS = 4, 8, 12, 16, 20, 24, 28, 32, 36, 40
    sH, sSP, sW, sROLE, sTAG, sKV, sT0, sT1, sT2, sRHO, sC, sSPIN, sQ, sW1o, sW2o, sF = 44, 45, 46, 47, 48, 49, 50, 51, 52, 53, 54, 55, 56, 57, 58, 59
    sM = 60
    def srd(n): return "s[%d:%d]" % (n, n + 3)
    vLANE, vG, vNN = 1, 2, 3
    vT = 4
    vM = 16
    vWQo, vW1o, vKo, vVo, vW2o, vPW, vL8, vL16, vXA, vXA1, vCONST, vEP = 20, 21, 22, 23, 24, 25, 26, 27, 28, 29, 30, 31
    vXN = 32
    vXN1 = 52
    vXS = 54
    vA0, vA1 = 60, 64
    vAQ, vAH = 68, 72
    vAT = 76
    vF = 92
    vWQ = 108
    vW1 = 188
    vK = 196
    vV = 108
    vPA = 140
    vW2 = 172
    vS0, vS1 = 92, 96
    vO = 100
    vPF = 228
    NV = 232
    def vr(n, c=4): return "v[%d:%d]" % (n, n + c - 1)

    a("s_cmp_ge_u32 s2, 256")
    a("s_cbranch_scc1 L_END")
    if stamps:
        for k in range(8):
            a("s_mov_b64 s[%d:%d], 0" % (72 + 2 * k, 73 + 2 * k))
    stamp(0)
    for (r, off) in ((X, 0), (WS, 96), (WQ, 24), (W1, 48), (K, 8), (V, 16), (B1, 56), (B2, 72), (OUT, 80)):
        a("s_load_dwordx2 s[%d:%d], s[0:1], %d" % (r, r + 1, off))
    a("v_and_b32 v%d, 63, v0" % vLANE)
    a("v_lshrrev_b32 v%d, 6, v0" % vT)
    a("v_lshlrev_b32 v%d, 4, v%d" % (vL16, vLANE))
    a("v_readfirstlane_b32 s%d, v%d" % (sW, vT))
    a("s_and_b32 s%d, s2, 31" % sH)
    a("s_lshr_b32 s%d, s2, 5" % sSP)
    a("s_sub_u32 s%d, s2, 160" % sT0)
    a("s_mul_i32 s%d, s%d, 205" % (sT1, sT0))
    a("s_lshr_b32 s%d, s%d, 10" % (sT1, sT1))
    a("s_mul_i32 s%d, s%d, 5" % (sT2, sT1))
    a("s_sub_u32 s%d, s%d, s%d" % (sT2, sT0, sT2))
    a("s_cmp_ge_u32 s2, 230")
    a("s_cselect_b32 s%d, 2, 1" % sROLE)
    a("s_cmp_lt_u32 s2, 160")
    a("s_cselect_b32 s%d, 0, s%d" % (sROLE, sROLE))
    a("s_cselect_b32 s%d, s%d, s%d" % (sRHO, sH, sT1))
    a("s_cselect_b32 s%d, s%d, s%d" % (sC, sSP, sT2))
    a("s_cselect_b32 s%d, 32, 64" % sT0)
    a("s_mov_b32 s%d, %d" % (W2 + 2, 1728 * 1280))
    a("s_cselect_b32 s%d, %d, s%d" % (W2 + 2, 4096 * 1280, W2 + 2))
    a("s_load_dwordx2 s[%d:%d], s[0:1], s%d" % (W2, W2 + 1, sT0))
    if prefetch:
        a("s_cmp_ge_u32 s2, 32")
        a("s_cbranch_scc1 L_NOPF")
        a("s_cmp_lg_u32 s%d, 7" % sW)
        a("s_cbranch_scc1 L_NOPF")
        a("s_getpc_b64 s[%d:%d]" % (sM, sM + 1))
        for i in range(codekb):
            if i and i % 4 == 0:
                a("s_add_u32 s%d, s%d, 4096" % (sM, sM)); a("s_addc_u32 s%d, s%d, 0" % (sM + 1, sM + 1))
            a("global_load_dwordx4 %s, v%d, s[%d:%d] offset:%d" % (vr(vPF), vL16, sM, sM + 1, (i % 4) * 1024))
        a("L_NOPF:")
    for (r, n) in ((X, 1280), (WS, 256 << 20), (WQ, 640 * 8192), (W1, 640 * 3456), (K, 64 << 20), (V, 64 << 20), (B1, 3456), (B2, 1280), (OUT, 1280)):
        a("s_mov_b32 s%d, 0x%x" % (r + 2, n)); a("s_mov_b32 s%d, 0x20000" % (r + 3))
    a("s_mov_b32 s%d, 0x20000" % (W2 + 3))
    a("v_lshrrev_b32 v%d, 4, v%d" % (vG, vLANE))
    a("v_and_b32 v%d, 15, v%d" % (vNN, vLANE))
    a("v_lshlrev_b32 v%d, 2, v%d" % (vT + 1, vLANE))
    a("v_lshlrev_b32 v%d, 3, v%d" % (vL8, vLANE))
    a("v_lshlrev_b32 v%d, 4, v%d" % (vT + 2, vNN))
    a("s_add_u32 s%d, s%d, s%d" % (sT0, sW, sSP))
    a("s_lshl_b32 s%d, s%d, 2" % (sT0, sT0))
    a("v_add_u32 v%d, s%d, v%d" % (vT + 3, sT0, vG))
    a("v_and_b32 v%d, 31, v%d" % (vT + 3, vT + 3))
    a("v_mul_u32_u24 v%d, 163840, v%d" % (vWQo, vT + 3))
    a("v_add_u32 v%d, v%d, v%d" % (vWQo, vWQo, vT + 2))
    a("v_mul_u32_u24 v%d, 80, v%d" % (vXA, vT + 3))
    a("s_lshl_b32 s%d, s%d, 8" % (sQ, sH))
    a("v_mov_b32 v%d, 0" % (vT + 4))
    a("s_waitcnt lgkmcnt(0)")
    a("buffer_load_dword v%d, v%d, %s, 0 offen offset:%d sc1" % (vEP, vT + 4, srd(WS), WS_EPOCH))
    a("buffer_load_dwordx4 %s, v%d, %s, 0 offen" % (vr(vXS), vL16, srd(X)))
    a("buffer_load_dword v%d, v%d, %s, 0 offen offset:1024" % (vXS + 4, vT + 1, srd(X)))
    a("s_cmp_eq_u32 s%d, 0" % sROLE)
    a("s_cbranch_scc1 L_C0")
    a("v_lshrrev_b32 v%d, 5, v%d" % (vT + 5, vLANE))
    a("s_cmp_eq_u32 s%d, 1" % sROLE)
    a("s_cbranch_scc0 L_C2")
    a("v_and_b32 v%d, 7, v%d" % (vT + 6, vLANE))
    a("v_lshl_add_u32 v%d, v%d, 1, v%d" % (vT + 5, vT + 6, vT + 5))
    a("s_lshl_b32 s%d, s%d, 7" % (sT0, sRHO))
    a("s_lshl_b32 s%d, s%d, 4" % (sT1, sW))
    a("s_add_u32 s%d, s%d, s%d" % (sT0, sT0, sT1))
    a("v_add_lshl_u32 v%d, v%d, s%d, 1" % (vT + 5, vT + 5, sT0))
    a("buffer_load_short_d16_hi v%d, v%d, %s, 0 offen" % (vCONST, vT + 5, srd(B1)))
    a("s_branch L_C0")
    a("L_C2:")
    a("s_sub_u32 s%d, s2, 230" % sF)
    a("s_lshl_b32 s%d, s%d, 2" % (sF, sF))
    a("s_add_u32 s%d, s%d, s%d" % (sF, sF, sW))
    a("v_and_b32 v%d, 3, v%d" % (vT + 6, vLANE))
    a("v_lshl_add_u32 v%d, v%d, 1, v%d" % (vT + 5, vT + 6, vT + 5))
    a("s_lshl_b32 s%d, s%d, 3" % (sT0, sF))
    a("v_add_lshl_u32 v%d, v%d, s%d, 1" % (vXA1, vT + 5, sT0))
    a("buffer_load_ushort v%d, v%d, %s, 0 offen" % (vPF + 1, vXA1, srd(OUT)))
    a("s_mov_b32 exec_lo, 0x0000ffff")
    a("s_mov_b32 exec_hi, 0x0000ffff")
    a("buffer_load_short_d16_hi v%d, v%d, %s, 0 offen" % (vCONST, vXA1, srd(X)))
    a("s_not_b64 exec, exec")
    a("buffer_load_short_d16_hi v%d, v%d, %s, 0 offen" % (vCONST, vXA1, srd(B2)))
    a("s_mov_b64 exec, -1")
    a("L_C0:")
    for i in range(20):
        a("buffer_load_dwordx4 %s, v%d, %s, s%d offen nt" % (vr(vWQ + 4 * i), vWQo, srd(WQ), sQ))
        if i < 19: a("s_addk_i32 s%d, 0x2000" % sQ)
    a("s_and_b32 s%d, s2, 15" % sT0)
    a("s_mul_i32 s%d, s%d, 40" % (sT0, sT0))
    a("s_min_u32 s%d, s%d, 4" % (sT1, sW))
    a("s_lshl_b32 s%d, s%d, 3" % (sT1, sT1))
    a("s_add_u32 s%d, s%d, s%d" % (sT0, sT0, sT1))
    a("s_mul_i32 s%d, s%d, 3456" % (sW1o, sT0))
    a("s_lshr_b32 s%d, s2, 4" % sT1)
    a("s_lshl_b32 s%d, s%d, 8" % (sT1, sT1))
    a("s_add_u32 s%d, s%d, s%d" % (sW1o, sW1o, sT1))
    a("s_cmp_ge_u32 s%d, 5" % sW)
    a("s_cselect_b32 s%d, 0x%x, s%d" % (sW1o, OOB, sW1o))
    a("s_cmp_ge_u32 s2, 224")
    a("s_cselect_b32 s%d, 0x%x, s%d" % (sW1o, OOB, sW1o))
    a("v_mul_u32_u24 v%d, 6912, v%d" % (vW1o, vG))
    a("v_add_u32 v%d, v%d, v%d" % (vW1o, vW1o, vT + 2))
    a("s_lshl_b32 s%d, s%d, 2" % (sT0, sT0))
    a("v_lshl_add_u32 v%d, v%d, 3, s%d" % (vXA1, vG, sT0))
    a("buffer_load_dwordx4 %s, v%d, %s, s%d offen nt" % (vr(vW1), vW1o, srd(W1), sW1o))
    a("buffer_load_dwordx4 %s, v%d, %s, s%d offen offset:3456 nt" % (vr(vW1 + 4), vW1o, srd(W1), sW1o))
    a("s_lshl_b32 s%d, s%d, 21" % (sKV, sH))
    a("s_lshl_b32 s%d, s%d, 16" % (sT0, sSP))
    a("s_add_u32 s%d, s%d, s%d" % (sKV, sKV, sT0))
    a("s_lshl_b32 s%d, s%d, 13" % (sT0, sW))
    a("s_add_u32 s%d, s%d, s%d" % (sKV, sKV, sT0))
    a("s_add_u32 s%d, s%d, 0x180000" % (sKV, sKV))
    a("s_add_u32 s%d, s%d, 0x1000" % (sQ, sKV))
    a("v_lshrrev_b32 v%d, 2, v%d" % (vT + 3, vNN))
    a("v_lshlrev_b32 v%d, 8, v%d" % (vKo, vT + 3))
    a("v_lshl_add_u32 v%d, v%d, 6, v%d" % (vKo, vG, vKo))
    a("v_and_b32 v%d, 3, v%d" % (vT + 3, vNN))
    a("v_lshl_add_u32 v%d, v%d, 4, v%d" % (vKo, vT + 3, vKo))
    a("v_lshl_add_u32 v%d, v%d, 10, v%d" % (vVo, vG, vT + 2))
    vQA = 15
    a("v_lshlrev_b32 v%d, 4, v%d" % (vQA, vT + 3))
    a("v_lshl_add_u32 v%d, v%d, 6, v%d" % (vQA, vG, vQA))
    a("v_and_b32 v%d, 1, v%d" % (vT + 3, vG))
    a("v_lshlrev_b32 v%d, 3, v%d" % (vT + 3, vT + 3))
    a("v_lshrrev_b32 v%d, 1, v%d" % (vT + 4, vG))
    a("v_add_u32 v%d, v%d, v%d" % (vT + 3, vT + 3, vT + 4))
    a("v_mul_u32_u24 v%d, 1280, v%d" % (vW2o, vT + 3))
    a("v_add_u32 v%d, v%d, v%d" % (vW2o, vW2o, vT + 2))
    a("s_lshl_b32 s%d, s%d, 3" % (sT0, sRHO))
    a("s_add_u32 s%d, s%d, s%d" % (sT0, sT0, sW))
    a("s_mul_i32 s%d, s%d, %d" % (sW2o, sT0, 16 * 1280))
    a("s_lshl_b32 s%d, s%d, 8" % (sT0, sC))
    a("s_add_u32 s%d, s%d, s%d" % (sW2o, sW2o, sT0))
    a("s_cmp_eq_u32 s%d, 2" % sROLE)
    a("s_cselect_b32 s%d, 0x%x, s%d" % (sW2o, OOB, sW2o))
    a("s_lshl_b32 s%d, s%d, 9" % (sT0, sW))
    a("v_lshl_add_u32 v%d, v%d, 4, s%d" % (vPW, vG, sT0))
    a("v_lshl_add_u32 v%d, v%d, 5, v%d" % (vPW, vNN, vPW))
    a("v_and_b32 v%d, 1, v%d" % (vT + 3, vNN))
    a("v_lshlrev_b32 v%d, 4, v%d" % (vT + 3, vT + 3))
    a("v_mov_b32 v%d, 0xffff" % (vT + 4))
    a("v_lshlrev_b32 v%d, v%d, v%d" % (vT + 3, vT + 3, vT + 4))
    a("v_lshrrev_b32 v%d, 1, v%d" % (vT + 4, vNN))
    for r in range(4):
        a("v_cmp_eq_u32 s[%d:%d], %d, v%d" % (sM + 2 * r, sM + 2 * r + 1, r, vT + 4))
    for r in range(16):
        a("v_mov_b32 v%d, 0" % (vAT + r))
    for r in range(4):
        a("v_cndmask_b32 v%d, 0, v%d, s[%d:%d]" % (vM + r, vT + 3, sM + 2 * r, sM + 2 * r + 1))
    a("v_mov_b32 v%d, 0xff800000" % (vT + 3))
    a("v_mov_b32 v%d, %d" % (vT + 4, L_MX))
    a("ds_write_b32 v%d, v%d" % (vT + 4, vT + 3))
    a("s_waitcnt vmcnt(22)")
    stamp(1)
    a("v_readfirstlane_b32 s%d, v%d" % (sTAG, vEP))
    for k in range(5):
        a("v_lshlrev_b32 v%d, 16, v%d" % (vF + 2 * k, vXS + k))
        a("v_and_b32 v%d, 0xffff0000, v%d" % (vF + 2 * k + 1, vXS + k))
    a("s_add_u32 s%d, s%d, 1" % (sTAG, sTAG))
    t0, t1, t2, t3 = vT, vT + 1, vT + 2, vT + 3
    a("v_pk_add_f32 %s, %s, %s" % (vr(t0, 2), vr(vF, 2), vr(vF + 2, 2)))
    a("v_pk_add_f32 %s, %s, %s" % (vr(t2, 2), vr(vF + 4, 2), vr(vF + 6, 2)))
    a("v_pk_add_f32 %s, %s, %s" % (vr(t0, 2), vr(t0, 2), vr(vF + 8, 2)))
    a("v_pk_add_f32 %s, %s, %s" % (vr(t0, 2), vr(t0, 2), vr(t2, 2)))
    a("v_add_f32 v%d, v%d, v%d" % (t0, t0, t1))
    def wave_sum(v, sdst, op="add"):
        for ctl in ("row_ror:8", "row_ror:4", "row_ror:2", "row_ror:1", "row_bcast:15 row_mask:0xa", "row_bcast:31 row_mask:0xc"):
            a("s_nop 1")
            rm = "" if "row_mask" in ctl else " row_mask:0xf"
            a("v_%s_f32_dpp v%d, v%d, v%d %s%s bank_mask:0xf" % (op, v, v, v, ctl, rm))
        a("s_nop 0")
        a("v_readlane_b32 s%d, v%d, 63" % (sdst, v))
    wave_sum(t0, sT0)
    a("v_mov_b32 v%d, %s" % (t1, f32(1.0 / 640)))
    a("s_nop 0")
    a("v_mul_f32 v%d, s%d, v%d" % (t0, sT0, t1))
    vMEAN = vT + 4
    a("v_cvt_pk_bf16_f32 v%d, v%d, v%d" % (vMEAN, t0, t0))
    a("v_and_b32 v%d, 0xffff0000, v%d" % (vMEAN, vMEAN))
    for k in range(10):
        a("v_sub_f32 v%d, v%d, v%d" % (t2 + (k & 1), vF + k, t0))
        if k < 2:
            a("v_mul_f32 v%d, v%d, v%d" % (vT + 6 + (k & 1), t2 + (k & 1), t2 + (k & 1)))
        else:
            a("v_fmac_f32 v%d, v%d, v%d" % (vT + 6 + (k & 1), t2 + (k & 1), t2 + (k & 1)))
    a("v_add_f32 v%d, v%d, v%d" % (t0, vT + 6, vT + 7))
    wave_sum(t0, sT0)
    for k in range(10):
        a("v_sub_f32 v%d, v%d, v%d" % (vF + k, vF + k, vMEAN))
    a("v_mul_f32 v%d, s%d, v%d" % (t0, sT0, t1))
    a("v_cvt_pk_bf16_f32 v%d, v%d, v%d" % (t0, t0, t0))
    a("v_and_b32 v%d, 0xffff0000, v%d" % (t0, t0))
    a("v_add_f32 v%d, %s, v%d" % (t0, f32(1e-5), t0))
    a("v_cvt_pk_bf16_f32 v%d, v%d, v%d" % (t0, t0, t0))
    a("v_and_b32 v%d, 0xffff0000, v%d" % (t0, t0))
    a("v_sqrt_f32 v%d, v%d" % (t0, t0))
    for k in range(5):
        a("v_cvt_pk_bf16_f32 v%d, v%d, v%d" % (vXS + k, vF + 2 * k, vF + 2 * k + 1))
    a("v_cvt_pk_bf16_f32 v%d, v%d, v%d" % (t0, t0, t0))
    a("v_and_b32 v%d, 0xffff0000, v%d" % (t0, t0))
    a("v_rcp_f32 v%d, v%d" % (t0, t0))
    for k in range(5):
        a("v_lshlrev_b32 v%d, 16, v%d" % (vF + 2 * k, vXS + k))
        a("v_and_b32 v%d, 0xffff0000, v%d" % (vF + 2 * k + 1, vXS + k))
    for k in range(10):
        a("v_mul_f32 v%d, v%d, v%d" % (vF + k, vF + k, t0))
    for k in range(10):
        a("v_cvt_pk_bf16_f32 v%d, v%d, v%d" % (vF + k, vF + k, vF + k))
    a("v_lshlrev_b32 v%d, 5, v%d" % (t0, vLANE))
    a("ds_write_b128 v%d, %s" % (t0, vr(vF)))
    a("ds_write_b128 v%d, %s offset:16" % (t0, vr(vF + 4)))
    a("ds_write_b64 v%d, %s offset:2048" % (vL8, vr(vF + 8, 2)))
    a("s_waitcnt lgkmcnt(0)")
    for k in range(5):
        a("ds_read_b128 %s, v%d offset:%d" % (vr(vXN + 4 * k), vXA, 16 * k))
    a("ds_read_b64 %s, v%d" % (vr(vXN1, 2), vXA1))
    for L in range(8):
        a("buffer_load_dwordx4 %s, v%d, %s, s%d offen offset:%d nt" % (vr(vK + 4 * L), vKo, srd(K), sKV if L < 4 else sQ, (L % 4) * 1024))
    a("s_waitcnt vmcnt(8) lgkmcnt(0)")
    stamp(2)
    seq = [(vXN + i, vWQ + 4 * i, vAQ, i == 0) for i in range(20)] + [(vXN1 + i, vW1 + 4 * i, vAH, i == 0) for i in range(2)]
    def build(idx):
        A = vA0 if idx % 2 == 0 else vA1
        for r in range(4):
            a("v_and_b32 v%d, v%d, v%d" % (A + r, vM + r, seq[idx][0]))
    build(0)
    for idx in range(len(seq)):
        if idx + 1 < len(seq): build(idx + 1)
        else: a("s_nop 1")
        A = vA0 if idx % 2 == 0 else vA1
        _, B, acc, first = seq[idx]
        a("v_mfma_f32_16x16x32_bf16 %s, %s, %s, %s" % (vr(acc), vr(A), vr(B), "0" if first else vr(acc)))
    for aa in range(2):
        for i in range(4):
            a("buffer_load_dwordx4 %s, v%d, %s, s%d offen offset:%d nt" % (vr(vV + 16 * aa + 4 * i), vVo, srd(V), sKV if aa == 0 else sQ, i * 256))
    a("s_mov_b32 exec_hi, 0")
    a("ds_write_b128 v%d, %s offset:%d" % (vPW, vr(vAQ), U_QP * 512))
    a("ds_write_b128 v%d, %s offset:%d" % (vPW, vr(vAH), U_HP * 512))
    a("s_mov_b32 exec_hi, -1")
    a("s_waitcnt lgkmcnt(0)")
    a("s_barrier")
    def reduce8(unit, dst):
        for k in range(4):
            a("ds_read2st64_b64 %s, v%d offset0:%d offset1:%d" % (vr(dst + 4 * k), vL8, unit + 2 * k, unit + 2 * k + 1))
        a("s_waitcnt lgkmcnt(2)")
        a("v_pk_add_f32 %s, %s, %s" % (vr(dst, 2), vr(dst, 2), vr(dst + 2, 2)))
        a("v_pk_add_f32 %s, %s, %s" % (vr(dst + 4, 2), vr(dst + 4, 2), vr(dst + 6, 2)))
        a("s_waitcnt lgkmcnt(0)")
        a("v_pk_add_f32 %s, %s, %s" % (vr(dst + 8, 2), vr(dst + 8, 2), vr(dst + 10, 2)))
        a("v_pk_add_f32 %s, %s, %s" % (vr(dst + 12, 2), vr(dst + 12, 2), vr(dst + 14, 2)))
        a("v_pk_add_f32 %s, %s, %s" % (vr(dst, 2), vr(dst, 2), vr(dst + 4, 2)))
        a("v_pk_add_f32 %s, %s, %s" % (vr(dst + 8, 2), vr(dst + 8, 2), vr(dst + 12, 2)))
        a("v_pk_add_f32 %s, %s, %s" % (vr(dst, 2), vr(dst, 2), vr(dst + 8, 2)))
    vR = 32
    def publish(voff, soff):
        a("v_mov_b32 v%d, v%d" % (vR + 2, vR + 1))
        a("v_mov_b32 v%d, s%d" % (vR + 1, sTAG))
        a("v_mov_b32 v%d, s%d" % (vR + 3, sTAG))
        a("buffer_store_dwordx4 %s, v%d, %s, s%d offen sc1" % (vr(vR), voff, srd(WS), soff))
    reduce8(U_QP, vR)
    a("v_cvt_pk_bf16_f32 v%d, v%d, v%d" % (vR, vR, vR + 1))
    a("v_lshlrev_b32 v%d, 2, v%d" % (t0, vLANE))
    a("ds_write_b32 v%d, v%d offset:%d" % (t0, vR, L_QB))
    a("s_waitcnt lgkmcnt(0)")
    for t in range(4):
        a("s_mov_b32 exec_lo, 0x%08x" % (0x000f000f << (4 * t)))
        a("s_mov_b32 exec_hi, 0x%08x" % (0x000f000f << (4 * t)))
        a("ds_read_b128 %s, v%d offset:%d" % (vr(vAT + 4 * t), vQA, L_QB))
    a("s_mov_b64 exec, -1")
    a("s_cmp_lg_u32 s%d, 7" % sW)
    a("s_cbranch_scc1 L_NOH")
    a("s_cmp_ge_u32 s2, 224")
    a("s_cbranch_scc1 L_NOH")
    reduce8(U_HP, vR)
    a("s_lshl_b32 s%d, s2, 10" % sT0)
    a("s_add_u32 s%d, s%d, 0x%x" % (sT0, sT0, WS_H))
    publish(vL16, sT0)
    a("L_NOH:")
    a("s_waitcnt vmcnt(8) lgkmcnt(0)")
    stamp(3)
    for L in range(8):
        acc = vS0 if L < 4 else vS1
        a("v_mfma_f32_16x16x32_bf16 %s, %s, %s, %s" % (vr(acc), vr(vAT + 4 * (L % 4)), vr(vK + 4 * L), "0" if L % 4 == 0 else vr(acc)))
    a("s_nop 3")
    s0, s1 = vT, vT + 1
    a("v_mov_b32_dpp v%d, v%d quad_perm:[0,0,0,0] row_mask:0xf bank_mask:0xf" % (s0, vS0))
    for k in range(1, 4):
        a("s_nop 1")
        a("v_add_f32_dpp v%d, v%d, v%d quad_perm:[%d,%d,%d,%d] row_mask:0xf bank_mask:0xf" % (s0, vS0 + k, s0, k, k, k, k))
    a("v_mov_b32_dpp v%d, v%d quad_perm:[0,0,0,0] row_mask:0xf bank_mask:0xf" % (s1, vS1))
    for k in range(1, 4):
        a("s_nop 1")
        a("v_add_f32_dpp v%d, v%d, v%d quad_perm:[%d,%d,%d,%d] row_mask:0xf bank_mask:0xf" % (s1, vS1 + k, s1, k, k, k, k))
    a("v_cvt_pk_bf16_f32 v%d, v%d, v%d" % (t2, s0, s1))
    a("v_lshlrev_b32 v%d, 16, v%d" % (s0, t2))
    a("v_and_b32 v%d, 0xffff0000, v%d" % (s1, t2))
    a("v_mul_f32 v%d, %s, v%d" % (s0, f32(128 ** -0.5), s0))
    a("v_mul_f32 v%d, %s, v%d" % (s1, f32(128 ** -0.5), s1))
    a("v_cvt_pk_bf16_f32 v%d, v%d, v%d" % (t2, s0, s1))
    a("v_lshlrev_b32 v%d, 16, v%d" % (s0, t2))
    a("v_and_b32 v%d, 0xffff0000, v%d" % (s1, t2))
    a("v_max_f32 v%d, v%d, v%d" % (t2, s0, s1))
    a("s_nop 1")
    a("v_max_f32_dpp v%d, v%d, v%d row_ror:4 row_mask:0xf bank_mask:0xf" % (t2, t2, t2))
    a("s_nop 1")
    a("v_max_f32_dpp v%d, v%d, v%d row_ror:8 row_mask:0xf bank_mask:0xf" % (t2, t2, t2))
    a("v_mov_b32 v%d, %d" % (t3, L_MX))
    a("s_mov_b32 exec_lo, 0x00010001")
    a("s_mov_b32 exec_hi, 0x00010001")
    a("ds_max_f32 v%d, v%d" % (t3, t2))
    a("s_mov_b64 exec, -1")
    a("s_waitcnt lgkmcnt(0)")
    a("s_barrier")
    vMX = vT + 4
    a("ds_read_b32 v%d, v%d" % (vMX, t3))
    a("s_waitcnt lgkmcnt(0)")
    a("v_sub_f32 v%d, v%d, v%d" % (s0, s0, vMX))
    a("v_sub_f32 v%d, v%d, v%d" % (s1, s1, vMX))
    a("v_mul_f32 v%d, %s, v%d" % (s0, f32(1.4426950408889634), s0))
    a("v_mul_f32 v%d, %s, v%d" % (s1, f32(1.4426950408889634), s1))
    a("v_exp_f32 v%d, v%d" % (s0, s0))
    a("v_exp_f32 v%d, v%d" % (s1, s1))
    a("s_nop 0")
    a("v_add_f32 v%d, v%d, v%d" % (t2, s0, s1))
    a("v_cvt_pk_bf16_f32 v%d, v%d, v%d" % (s0, s0, s0))
    a("v_cvt_pk_bf16_f32 v%d, v%d, v%d" % (s1, s1, s1))
    for ctl in ("row_ror:4 row_mask:0xf", "row_ror:8 row_mask:0xf", "row_bcast:15 row_mask:0xa", "row_bcast:31 row_mask:0xc"):
        a("v_add_f32_dpp v%d, v%d, v%d %s bank_mask:0xf" % (t2, t2, t2, ctl))
        a("s_nop 1")
    a("s_lshl_b32 s%d, s%d, 2" % (sT0, sW))
    a("v_mov_b32 v%d, s%d" % (t3, sT0))
    a("s_mov_b32 exec_lo, 0")
    a("s_mov_b32 exec_hi, 0x80000000")
    a("ds_write_b32 v%d, v%d offset:%d" % (t3, t2, L_LS))
    a("s_mov_b64 exec, -1")
    a("s_add_u32 s%d, s%d, 5120" % (sT0, sW2o))
    for i in range(4):
        a("buffer_load_dwordx4 %s, v%d, %s, s%d offen offset:%d nt" % (vr(vW2 + 4 * i), vW2o, srd(W2), sW2o if i < 2 else sT0, (i % 2) * 2560))
    for aa in range(2):
        for i in range(4):
            for r in range(4):
                a("v_and_b32_dpp v%d, v%d, v%d row_newbcast:%d row_mask:0xf bank_mask:0xf" % (vPA + 16 * aa + 4 * i + r, s0 + aa, vM + r, 4 * i))
    a("s_waitcnt lgkmcnt(0)")
    a("s_barrier")
    a("s_lshl_b32 s%d, s%d, 3" % (sT1, sH))
    a("s_add_u32 s%d, s%d, s%d" % (sT1, sT1, sSP))
    a("s_cmp_lg_u32 s%d, 0" % sW)
    a("s_cbranch_scc1 L_NOML")
    a("v_mov_b32 v%d, 0" % t3)
    a("ds_read_b128 %s, v%d offset:%d" % (vr(vR), t3, L_LS))
    a("ds_read_b128 %s, v%d offset:%d" % (vr(vR + 4), t3, L_LS + 16))
    a("s_lshl_b32 s%d, s%d, 4" % (sT0, sT1))
    a("s_add_u32 s%d, s%d, 0x%x" % (sT0, sT0, WS_ML))
    a("s_waitcnt lgkmcnt(0)")
    a("v_pk_add_f32 %s, %s, %s" % (vr(vR, 2), vr(vR, 2), vr(vR + 2, 2)))
    a("v_pk_add_f32 %s, %s, %s" % (vr(vR + 4, 2), vr(vR + 4, 2), vr(vR + 6, 2)))
    a("v_pk_add_f32 %s, %s, %s" % (vr(vR, 2), vr(vR, 2), vr(vR + 4, 2)))
    a("v_add_f32 v%d, v%d, v%d" % (vR + 1, vR, vR + 1))
    a("v_mov_b32 v%d, v%d" % (vR, vMX))
    a("s_mov_b64 exec, 1")
    publish(t3, sT0)
    a("s_mov_b64 exec, -1")
    a("L_NOML:")
    stamp(4)
    for k in range(8):
        a("s_waitcnt vmcnt(%d)" % (4 + 7 - k))
        a("v_mfma_f32_16x16x32_bf16 %s, %s, %s, %s" % (vr(vO), vr(vPA + 4 * k), vr(vV + 4 * k), "0" if k == 0 else vr(vO)))
    a("s_lshl_b32 s%d, s%d, 10" % (sT0, sT1))
    a("s_add_u32 s%d, s%d, 0x%x" % (sT0, sT0, WS_O))
    a("s_mov_b32 exec_hi, 0")
    a("s_nop 4")
    a("ds_write_b128 v%d, %s offset:%d" % (vPW, vr(vO), U_OP * 512))
    a("s_mov_b32 exec_hi, -1")
    a("s_waitcnt lgkmcnt(0)")
    a("s_barrier")
    a("s_cmp_lg_u32 s%d, 0" % sW)
    a("s_cbranch_scc1 L_NOO")
    reduce8(U_OP, vR)
    publish(vL16, sT0)
    a("L_NOO:")
    stamp(5)
    a("s_mov_b32 s%d, 0x40000" % sSPIN)
    a("s_cmp_eq_u32 s%d, 2" % sROLE)
    a("s_cbranch_scc1 L_FIN")
    vGA, vGB = vT + 6, vT + 7
    a("v_lshrrev_b32 v%d, 3, v%d" % (vGB, vLANE))
    a("v_and_b32 v%d, 7, v%d" % (t3, vLANE))
    a("s_lshl_b32 s%d, s%d, 7" % (sT0, sW))
    a("v_lshl_add_u32 v%d, v%d, 4, s%d" % (vGA, t3, sT0))
    a("v_lshl_add_u32 v%d, v%d, 10, v%d" % (vGA, vGB, vGA))
    vP0, vP1 = 48, 52
    a("s_cmp_eq_u32 s%d, 1" % sROLE)
    a("s_cbranch_scc1 L_R1")
    a("v_lshlrev_b32 v%d, 4, v%d" % (vGB, vGB))
    a("s_lshl_b32 s%d, s%d, 13" % (sT0, sH))
    a("s_add_u32 s%d, s%d, 0x%x" % (sT0, sT0, WS_O))
    a("s_lshl_b32 s%d, s%d, 7" % (sT1, sH))
    a("s_add_u32 s%d, s%d, 0x%x" % (sT1, sT1, WS_ML))
    def tagcheck(label, regs4):
        a("v_xor_b32 v%d, s%d, v%d" % (t0, sTAG, regs4[0]))
        a("v_xor_b32 v%d, s%d, v%d" % (t1, sTAG, regs4[1]))
        a("v_xor_b32 v%d, s%d, v%d" % (t2, sTAG, regs4[2]))
        a("v_xor_b32 v%d, s%d, v%d" % (t3, sTAG, regs4[3]))
        a("v_or3_b32 v%d, v%d, v%d, v%d" % (t0, t0, t1, t2))
        a("v_or_b32 v%d, v%d, v%d" % (t0, t0, t3))
        a("v_cmp_ne_u32 vcc, 0, v%d" % t0)
    a("L_POLL0:")
    a("s_sub_u32 s%d, s%d, 1" % (sSPIN, sSPIN))
    a("s_cbranch_scc1 L_EXIT")
    a("buffer_load_dwordx4 %s, v%d, %s, s%d offen sc1" % (vr(vP0), vGA, srd(WS), sT0))
    a("buffer_load_dwordx4 %s, v%d, %s, s%d offen sc1" % (vr(vP1), vGB, srd(WS), sT1))
    a("s_waitcnt vmcnt(0)")
    tagcheck("L_POLL0", [vP0 + 1, vP0 + 3, vP1 + 1, vP1 + 3])
    a("s_cbranch_vccnz L_POLL0")
    def allred(v, tmp, op):
        a("s_nop 1")
        a("v_%s_f32_dpp v%d, v%d, v%d row_ror:8 row_mask:0xf bank_mask:0xf" % (op, v, v, v))
        for sw in ("16", "32"):
            a("v_mov_b32 v%d, v%d" % (tmp, v))
            a("s_nop 1")
            a("v_permlane%s_swap_b32 v%d, v%d" % (sw, v, tmp))
            a("v_%s_f32 v%d, v%d, v%d" % (op, v, v, tmp))
    a("v_mov_b32 v%d, v%d" % (t0, vP1))
    allred(t0, t1, "max")
    a("v_sub_f32 v%d, v%d, v%d" % (t0, vP1, t0))
    a("v_mul_f32 v%d, %s, v%d" % (t0, f32(1.4426950408889634), t0))
    a("v_exp_f32 v%d, v%d" % (t0, t0))
    a("s_nop 0")
    a("v_mul_f32 v%d, v%d, v%d" % (t2, t0, vP1 + 2))
    allred(t2, t1, "add")
    a("v_rcp_f32 v%d, v%d" % (t2, t2))
    a("s_nop 0")
    a("v_mul_f32 v%d, v%d, v%d" % (t0, t0, t2))
    a("v_mul_f32 v%d, v%d, v%d" % (vP0, vP0, t0))
    a("v_mul_f32 v%d, v%d, v%d" % (vP0 + 2, vP0 + 2, t0))
    def tred():
        a("s_nop 1")
        a("v_permlane32_swap_b32 v%d, v%d" % (vP0, vP0 + 2))
        a("v_add_f32 v%d, v%d, v%d" % (vP0, vP0, vP0 + 2))
        a("v_mov_b32 v%d, v%d" % (t1, vP0))
        a("s_nop 1")
        a("v_permlane16_swap_b32 v%d, v%d" % (vP0, t1))
        a("v_add_f32 v%d, v%d, v%d" % (vP0, vP0, t1))
        a("s_nop 1")
        a("v_add_f32_dpp v%d, v%d, v%d row_ror:8 row_mask:0xf bank_mask:0xf" % (vP0, vP0, vP0))
    tred()
    a("s_branch L_GEMV2")
    a("L_R1:")
    a("s_lshl_b32 s%d, s%d, 14" % (sT0, sRHO))
    a("s_add_u32 s%d, s%d, 0x%x" % (sT0, sT0, WS_H))
    a("s_add_u32 s%d, s%d, 0x2000" % (sT1, sT0))
    a("L_POLL1:")
    a("s_sub_u32 s%d, s%d, 1" % (sSPIN, sSPIN))
    a("s_cbranch_scc1 L_EXIT")
    a("buffer_load_dwordx4 %s, v%d, %s, s%d offen sc1" % (vr(vP0), vGA, srd(WS), sT0))
    a("buffer_load_dwordx4 %s, v%d, %s, s%d offen sc1" % (vr(vP1), vGA, srd(WS), sT1))
    a("s_waitcnt vmcnt(0)")
    tagcheck("L_POLL1", [vP0 + 1, vP0 + 3, vP1 + 1, vP1 + 3])
    a("s_cbranch_vccnz L_POLL1")
    a("v_add_f32 v%d, v%d, v%d" % (vP0, vP0, vP1))
    a("v_add_f32 v%d, v%d, v%d" % (vP0 + 2, vP0 + 2, vP1 + 2))
    tred()
    a("v_cvt_pk_bf16_f32 v%d, v%d, v%d" % (vP0, vP0, vP0))
    a("v_and_b32 v%d, 0xffff0000, v%d" % (vP0, vP0))
    a("v_and_b32 v%d, 0xffff0000, v%d" % (vCONST, vCONST))
    a("v_add_f32 v%d, v%d, v%d" % (vP0, vP0, vCONST))
    a("v_cvt_pk_bf16_f32 v%d, v%d, v%d" % (vP0, vP0, vP0))
    a("v_and_b32 v%d, 0xffff0000, v%d" % (vP0, vP0))
    k0 = -2.0 * 0.7978845608028654 * 1.4426950408889634
    a("v_mul_f32 v%d, v%d, v%d" % (t0, vP0, vP0))
    a("v_mov_b32 v%d, %s" % (t1, f32(k0)))
    a("v_fmac_f32 v%d, %s, v%d" % (t1, f32(k0 * 0.044715), t0))
    a("v_mul_f32 v%d, v%d, v%d" % (t0, t1, vP0))
    a("v_exp_f32 v%d, v%d" % (t0, t0))
    a("s_nop 0")
    a("v_add_f32 v%d, 1.0, v%d" % (t0, t0))
    a("v_rcp_f32 v%d, v%d" % (t0, t0))
    a("s_nop 0")
    a("v_mul_f32 v%d, v%d, v%d" % (vP0, vP0, t0))
    a("s_lshl_b32 s%d, s%d, 3" % (sT0, sRHO))
    a("s_add_u32 s%d, s%d, s%d" % (sT0, sT0, sW))
    a("s_cmp_lt_u32 s%d, 108" % sT0)
    a("s_cbranch_scc1 L_R1B")
    a("v_mov_b32 v%d, 0" % vP0)
    a("L_R1B:")
    a("s_add_u32 s%d, s%d, 32" % (sRHO, sRHO))
    a("L_GEMV2:")
    a("v_cvt_pk_bf16_f32 v%d, v%d, v%d" % (vP0, vP0, vP0))
    a("s_nop 1")
    a("v_mov_b32_dpp v%d, v%d row_ror:4 row_mask:0xa bank_mask:0xf" % (vP0, vP0))
    a("s_nop 1")
    for i in range(4):
        for r in range(4):
            a("v_and_b32_dpp v%d, v%d, v%d row_newbcast:%d row_mask:0xf bank_mask:0xf" % (vPA + 4 * i + r, vP0, vM + r, i))
    for i in range(4):
        a("v_mfma_f32_16x16x32_bf16 %s, %s, %s, %s" % (vr(vO), vr(vPA + 4 * i), vr(vW2 + 4 * i), "0" if i == 0 else vr(vO)))
    a("v_lshrrev_b32 v%d, 2, v%d" % (t0, vLANE))
    a("v_mul_u32_u24 v%d, 3072, v%d" % (t0, t0))
    a("v_and_b32 v%d, 3, v%d" % (t1, vLANE))
    a("v_lshl_add_u32 v%d, v%d, 4, v%d" % (t0, t1, t0))
    a("s_mul_i32 s%d, s%d, %d" % (sT0, sC, 16 * 3072))
    a("s_lshl_b32 s%d, s%d, 6" % (sT1, sRHO))
    a("s_add_u32 s%d, s%d, s%d" % (sT0, sT0, sT1))
    a("s_add_u32 s%d, s%d, 0x%x" % (sT0, sT0, WS_F))
    a("s_mov_b32 exec_hi, 0")
    a("ds_write_b128 v%d, %s offset:%d" % (vPW, vr(vO), U_FP * 512))
    a("s_mov_b32 exec_hi, -1")
    a("s_waitcnt lgkmcnt(0)")
    a("s_barrier")
    a("s_cmp_lg_u32 s%d, 0" % sW)
    a("s_cbranch_scc1 L_EXIT")
    reduce8(U_FP, vR)
    publish(t0, sT0)
    a("s_branch L_EXIT")
    a("L_FIN:")
    a("s_cmp_ge_u32 s%d, 4" % sW)
    a("s_cbranch_scc1 L_EXIT")
    a("s_cmp_ge_u32 s%d, 80" % sF)
    a("s_cbranch_scc1 L_EXIT")
    a("s_mul_i32 s%d, s%d, 3072" % (sT0, sF))
    a("s_add_u32 s%d, s%d, 0x%x" % (sT0, sT0, WS_F))
    vP2 = 56
    a("v_lshrrev_b32 v%d, 5, v%d" % (vT + 5, vLANE))
    a("v_and_b32 v%d, 3, v%d" % (vT + 6, vLANE))
    a("v_lshl_add_u32 v%d, v%d, 1, v%d" % (vT + 5, vT + 6, vT + 5))
    a("s_lshl_b32 s%d, s%d, 3" % (sT1, sF))
    a("v_add_lshl_u32 v%d, v%d, s%d, 1" % (vPF, vT + 5, sT1))
    a("v_mov_b32 v%d, 0" % vP2)
    a("v_mov_b32 v%d, s%d" % (vP2 + 1, sTAG))
    a("v_mov_b32 v%d, 0" % (vP2 + 2))
    a("v_mov_b32 v%d, s%d" % (vP2 + 3, sTAG))
    a("L_POLL2:")
    a("s_sub_u32 s%d, s%d, 1" % (sSPIN, sSPIN))
    a("s_cbranch_scc1 L_EXIT")
    a("buffer_load_dwordx4 %s, v%d, %s, s%d offen sc1" % (vr(vP0), vL16, srd(WS), sT0))
    a("buffer_load_dwordx4 %s, v%d, %s, s%d offen offset:1024 sc1" % (vr(vP1), vL16, srd(WS), sT0))
    a("s_mov_b32 exec_hi, 0x00ffffff")
    a("buffer_load_dwordx4 %s, v%d, %s, s%d offen offset:2048 sc1" % (vr(vP2), vL16, srd(WS), sT0))
    a("s_mov_b32 exec_hi, -1")
    a("s_waitcnt vmcnt(0)")
    a("v_xor_b32 v%d, s%d, v%d" % (vT + 4, sTAG, vP2 + 1))
    a("v_xor_b32 v%d, s%d, v%d" % (vT + 5, sTAG, vP2 + 3))
    a("v_xor_b32 v%d, s%d, v%d" % (t0, sTAG, vP0 + 1))
    a("v_xor_b32 v%d, s%d, v%d" % (t1, sTAG, vP0 + 3))
    a("v_xor_b32 v%d, s%d, v%d" % (t2, sTAG, vP1 + 1))
    a("v_xor_b32 v%d, s%d, v%d" % (t3, sTAG, vP1 + 3))
    a("v_or3_b32 v%d, v%d, v%d, v%d" % (t0, t0, t1, t2))
    a("v_or3_b32 v%d, v%d, v%d, v%d" % (t3, t3, vT + 4, vT + 5))
    a("v_or_b32 v%d, v%d, v%d" % (t0, t0, t3))
    a("v_cmp_ne_u32 vcc, 0, v%d" % t0)
    a("s_cbranch_vccnz L_POLL2")
    stamp(6)
    a("v_add_f32 v%d, v%d, v%d" % (vP0, vP0, vP1))
    a("v_add_f32 v%d, v%d, v%d" % (vP0 + 2, vP0 + 2, vP1 + 2))
    a("v_permlane32_swap_b32 v%d, v%d" % (vP2, vP2 + 2))
    a("v_add_f32 v%d, v%d, v%d" % (vP2, vP2, vP2 + 2))
    a("v_permlane32_swap_b32 v%d, v%d" % (vP0, vP0 + 2))
    a("v_add_f32 v%d, v%d, v%d" % (vP0, vP0, vP0 + 2))
    a("s_nop 1")
    a("v_permlane16_swap_b32 v%d, v%d" % (vP0, vP2))
    a("v_add_f32 v%d, v%d, v%d" % (vP0, vP0, vP2))
    a("s_nop 1")
    a("v_add_f32_dpp v%d, v%d, v%d row_ror:4 row_mask:0xf bank_mask:0xf" % (vP0, vP0, vP0))
    a("v_and_b32 v%d, 0xffff0000, v%d" % (vCONST, vCONST))
    a("s_nop 0")
    a("v_add_f32_dpp v%d, v%d, v%d row_ror:8 row_mask:0xf bank_mask:0xf" % (vP0, vP0, vP0))
    a("v_cvt_pk_bf16_f32 v%d, v%d, v%d" % (vP0, vP0, vP0))
    a("v_and_b32 v%d, 0xffff0000, v%d" % (vP0, vP0))
    a("v_add_f32 v%d, v%d, v%d" % (vP0, vP0, vCONST))
    a("v_cvt_pk_bf16_f32 v%d, v%d, v%d" % (vP0, vP0, vP0))
    a("v_and_b32 v%d, 0xffff0000, v%d" % (vP0, vP0))
    a("v_mov_b32 v%d, v%d" % (t1, vP0))
    a("s_nop 1")
    a("v_permlane16_swap_b32 v%d, v%d" % (vP0, t1))
    a("v_add_f32 v%d, v%d, v%d" % (vP0, vP0, t1))
    a("v_cvt_pk_bf16_f32 v%d, v%d, v%d" % (vP0, vP0, vP0))
    a("s_mov_b32 exec_lo, 0xf")
    a("s_mov_b32 exec_hi, 0xf")
    a("buffer_store_short v%d, v%d, %s, 0 offen" % (vP0, vPF, srd(OUT)))
    a("s_cmp_lg_u32 s%d, 0" % sF)
    a("s_cbranch_scc1 L_EXIT")
    a("s_mov_b64 exec, 1")
    a("v_mov_b32 v%d, 0" % t0)
    a("v_mov_b32 v%d, s%d" % (t1, sTAG))
    a("buffer_store_dword v%d, v%d, %s, 0 offen offset:%d sc1" % (t1, t0, srd(WS), WS_EPOCH))
    a("L_EXIT:")
    if stamps:
        a("s_waitcnt vmcnt(0)")
        stamp(7)
        a("s_waitcnt lgkmcnt(0)")
        a("s_lshl_b32 s%d, s2, 3" % sT0)
        a("s_add_u32 s%d, s%d, s%d" % (sT0, sT0, sW))
        a("s_lshl_b32 s%d, s%d, 6" % (sT0, sT0))
        a("s_add_u32 s%d, s%d, 0x%x" % (sT0, sT0, WS_ST))
        a("s_mov_b64 exec, 1")
        a("v_mov_b32 v1, 0")
        for i in range(8):
            a("v_mov_b32 v2, s%d" % (72 + 2 * i)); a("v_mov_b32 v3, s%d" % (73 + 2 * i))
            a("buffer_store_dwordx2 v[2:3], v1, %s, s%d offen offset:%d" % (srd(WS), sT0, i * 8))
            a("s_nop 1")
    a("L_END:")
    a("s_endpgm")
    body = a.text()
    errs = hazard.check(body)
    if errs:
        print("\n".join(errs)); raise SystemExit("hazards")
    return wrap(body, 256, 512, LDS_BYTES, NV, sgpr=96)

if __name__ == "__main__":
    open("k1.s", "w").write(gen())
    open("k1s.s", "w").write(gen(stamps=True))
    open("k1s_nopf.s", "w").write(gen(stamps=True, prefetch=False))
```

```python
import sys, struct
from glib import *
import hazard

def f32(x):
    return "0x%08x" % struct.unpack("<I", struct.pack("<f", x))[0]

WS_EPOCH = 0
WS_ML = 0x1000
WS_O = 0x10000
WS_H = 0x50000
WS_F = 0x90000
WS_ALT = 0x100000
WS_ST = 0x8000000
U_XN, U_QP, U_HP, U_OP, U_FP, U_MISC = 0, 10, 14, 18, 22, 26
L_QB = U_MISC * 512
L_MX = L_QB + 256
L_LS = L_QB + 272
L_CNT = L_QB + 260
L_TAG = L_QB + 264
LDS_BYTES = L_QB + 512
OOB = 0x7ff00000
NST = 14
LOG2E = 1.4426950408889634

def gen(stamps=False, prefetch=True, codekb=6, nt="nt", qnt="nt", dual=True, st="sc1", ld="sc1", w2early=False, stag=True, kfirst=16, vfirst=0, tbit=0, warm=True, nA=32):
    a = Asm()
    def stamp(k):
        if stamps: a("s_memrealtime s[%d:%d]" % (72 + 2 * k, 73 + 2 * k))
    X, K, V, WQ, W2, W1, B1, B2, OUT, WS = 4, 8, 12, 16, 20, 24, 28, 32, 36, 40
    sH, sSP, sW, sROLE, sTAG, sT0, sT1, sT2, sRHO, sC, sSPIN, sQ, sW1o, sW2o, sF, sT3 = 44, 45, 46, 47, 48, 50, 51, 52, 53, 54, 55, 56, 57, 58, 59, 49
    sM = 60
    sKV = 68
    def srd(n): return "s[%d:%d]" % (n, n + 3)
    def vr(n, c=4): return "v[%d:%d]" % (n, n + c - 1)
    vLANE, vG, vNN = 1, 2, 3
    vT = 4
    t0, t1, t2, t3 = vT, vT + 1, vT + 2, vT + 3
    vM = 16
    vA, vB, vC, vD, vPW, vL8, vL16, vE, vCONST, vEP = 20, 21, 22, 23, 24, 25, 26, 27, 28, 29
    vXS = 30
    vXN = 36
    vXN1 = 56
    vA0, vA1 = 60, 64
    vAQ, vAH = 68, 72
    vW1 = 76
    vWQ = 88
    vW2 = 88
    vPA2 = 120
    vP = 152
    vR = 36
    vPF = 248
    NV = 252
    vK = 88
    vV = 152
    vAT = 36
    vS = 60
    vO = 76

    a("s_cmp_ge_u32 s2, 256")
    a("s_cbranch_scc1 L_END")
    if stamps:
        for k in range(NST): a("s_mov_b64 s[%d:%d], 0" % (72 + 2 * k, 73 + 2 * k))
    stamp(0)
    for (r, off) in ((WQ, 24), (X, 0), (K, 8), (V, 16), (WS, 96), (W1, 48), (B1, 56), (B2, 72), (OUT, 80)):
        a("s_load_dwordx2 s[%d:%d], s[0:1], %d" % (r, r + 1, off))
    a("v_and_b32 v%d, 63, v0" % vLANE)
    a("v_lshrrev_b32 v%d, 6, v0" % vT)
    a("v_lshlrev_b32 v%d, 4, v%d" % (vL16, vLANE))
    a("v_readfirstlane_b32 s%d, v%d" % (sW, vT))
    a("s_and_b32 s%d, s2, 31" % sH)
    a("s_lshr_b32 s%d, s2, 5" % sSP)
    a("v_lshrrev_b32 v%d, 4, v%d" % (vG, vLANE))
    a("v_and_b32 v%d, 15, v%d" % (vNN, vLANE))
    a("v_lshlrev_b32 v%d, 4, v%d" % (vE, vNN))
    for r in (WQ, X, K, V, WS, W1, B1, B2, OUT, W2):
        a("s_mov_b32 s%d, 0x20000" % (r + 3))
    a("s_cmp_ge_u32 s%d, 4" % sW)
    a("s_cbranch_scc1 L_KV")
    a("L_AUX0:")
    a("s_setprio 2")
    a("s_mov_b32 s%d, 0x%x" % (WQ + 2, 640 * 8192))
    a("s_mov_b32 s%d, 1280" % (X + 2))
    a("s_lshl_b32 s%d, s%d, 2" % (sT0, sW))
    a("v_add_u32 v%d, s%d, v%d" % (t3, sT0, vG))
    a("v_mul_u32_u24 v%d, %d, v%d" % (vA, 40 * 8192, t3))
    a("v_add_u32 v%d, v%d, v%d" % (vA, vA, vE))
    a("v_mul_u32_u24 v%d, 320, v%d" % (vB, t3))
    a("s_lshl_b32 s%d, s%d, 4" % (sT0, sSP))
    a("v_add_u32 v%d, s%d, v%d" % (vB, sT0, vB))
    a("s_lshl_b32 s%d, s%d, 8" % (sQ, sH))
    a("s_lshl_b32 s%d, s%d, 15" % (sT0, sSP))
    a("s_add_u32 s%d, s%d, s%d" % (sQ, sQ, sT0))
    a("v_lshlrev_b32 v%d, 2, v%d" % (t1, vLANE))
    a("v_mov_b32 v%d, 0xff800000" % t2)
    a("v_mov_b32 v%d, 0" % t3)
    a("v_mov_b32 v%d, %d" % (t0, L_MX))
    a("ds_write_b64 v%d, %s" % (t0, vr(t2, 2)))
    a("s_waitcnt lgkmcnt(0)")
    a("buffer_load_dwordx4 %s, v%d, %s, 0 offen" % (vr(vXS), vL16, srd(X)))
    a("buffer_load_dword v%d, v%d, %s, 0 offen offset:1024" % (vXS + 4, t1, srd(X)))
    def wq_loads(k0, k1):
        for k in range(k0, k1):
            if k and k % 4 == 0 and k >= 12:
                a("s_cmp_ge_u32 s%d, 0x%x" % (sQ, 40 * 8192))
                a("s_cselect_b32 s%d, 0x%x, 0" % (sT0, 40 * 8192))
                a("s_sub_u32 s%d, s%d, s%d" % (sQ, sQ, sT0))
            a("buffer_load_dwordx4 %s, v%d, %s, s%d offen %s" % (vr(vWQ + 4 * k), vA, srd(WQ), sQ, qnt))
            if k < 39: a("s_addk_i32 s%d, 0x2000" % sQ)
    def W1LOADS():
        for (r, n) in ((WS, 256 << 20), (W1, 640 * 3456), (B1, 3456), (B2, 1280), (OUT, 1280)):
            a("s_mov_b32 s%d, 0x%x" % (r + 2, n))
        a("s_and_b32 s%d, s2, 15" % sT0)
        a("s_mul_i32 s%d, s%d, 10" % (sT1, sT0))
        a("s_add_u32 s%d, s%d, s%d" % (sT1, sT1, sW))
        a("s_mul_i32 s%d, s%d, %d" % (sW1o, sT1, 4 * 3456))
        a("s_lshr_b32 s%d, s2, 4" % sT1)
        a("s_lshl_b32 s%d, s%d, 8" % (sT1, sT1))
        a("s_add_u32 s%d, s%d, s%d" % (sW1o, sW1o, sT1))
        a("s_cmp_ge_u32 s2, 224")
        a("s_cselect_b32 s%d, 0x%x, s%d" % (sW1o, OOB, sW1o))
        a("v_mul_u32_u24 v%d, 3456, v%d" % (vC, vG))
        a("v_add_u32 v%d, v%d, v%d" % (vC, vC, vE))
        a("buffer_load_dwordx4 %s, v%d, %s, s%d offen %s" % (vr(vW1), vC, srd(W1), sW1o, nt))
        a("s_add_u32 s%d, s%d, %d" % (sW1o, sW1o, 16 * 3456))
        a("buffer_load_dwordx4 %s, v%d, %s, s%d offen %s" % (vr(vW1 + 4), vC, srd(W1), sW1o, nt))
        a("s_add_u32 s%d, s%d, %d" % (sW1o, sW1o, 16 * 3456))
        a("s_cmp_ge_u32 s%d, 2" % sW)
        a("s_cselect_b32 s%d, 0x%x, s%d" % (sW1o, OOB, sW1o))
        a("buffer_load_dwordx4 %s, v%d, %s, s%d offen %s" % (vr(vW1 + 8), vC, srd(W1), sW1o, nt))
        a("v_mov_b32 v%d, 0" % t3)
        a("buffer_load_dword v%d, v%d, %s, 0 offen offset:%d sc1" % (vEP, t3, srd(WS), WS_EPOCH))
    a("s_bitcmp1_b32 s%d, %d" % (sSP, tbit))
    if not stag: a("s_cmp_eq_u32 s2, 9999")
    a("s_cselect_b32 s%d, 1, 0" % sF)
    a("s_cbranch_scc0 L_WQ")
    a("s_waitcnt vmcnt(0)")
    a("s_branch L_LN")
    a("L_WQ:")
    wq_loads(0, 40)
    W1LOADS()
    stamp(1)
    a("s_barrier")
    a("s_cmp_eq_u32 s%d, 1" % sF)
    a("s_cbranch_scc1 L_LNDONE")
    a("s_barrier")
    a("L_LN:")
    vF = vXN
    a("s_waitcnt vmcnt(44)")
    stamp(2)
    for k in range(5):
        a("v_lshlrev_b32 v%d, 16, v%d" % (vF + 2 * k, vXS + k))
        a("v_and_b32 v%d, 0xffff0000, v%d" % (vF + 2 * k + 1, vXS + k))
    a("v_pk_add_f32 %s, %s, %s" % (vr(t0, 2), vr(vF, 2), vr(vF + 2, 2)))
    a("v_pk_add_f32 %s, %s, %s" % (vr(t2, 2), vr(vF + 4, 2), vr(vF + 6, 2)))
    a("v_pk_add_f32 %s, %s, %s" % (vr(t0, 2), vr(t0, 2), vr(vF + 8, 2)))
    a("v_pk_add_f32 %s, %s, %s" % (vr(t0, 2), vr(t0, 2), vr(t2, 2)))
    a("v_add_f32 v%d, v%d, v%d" % (t0, t0, t1))
    def wave_sum(v, sdst):
        for ctl in ("row_ror:8", "row_ror:4", "row_ror:2", "row_ror:1", "row_bcast:15 row_mask:0xa", "row_bcast:31 row_mask:0xc"):
            a("s_nop 1")
            rm = "" if "row_mask" in ctl else " row_mask:0xf"
            a("v_add_f32_dpp v%d, v%d, v%d %s%s bank_mask:0xf" % (v, v, v, ctl, rm))
        a("s_nop 0")
        a("v_readlane_b32 s%d, v%d, 63" % (sdst, v))
    wave_sum(t0, sT1)
    a("v_mov_b32 v%d, %s" % (t1, f32(1.0 / 640)))
    a("s_nop 0")
    a("v_mul_f32 v%d, s%d, v%d" % (t0, sT1, t1))
    vMEAN = vT + 4
    a("v_cvt_pk_bf16_f32 v%d, v%d, v%d" % (vMEAN, t0, t0))
    a("v_and_b32 v%d, 0xffff0000, v%d" % (vMEAN, vMEAN))
    for k in range(10):
        a("v_sub_f32 v%d, v%d, v%d" % (t2 + (k & 1), vF + k, t0))
        if k < 2:
            a("v_mul_f32 v%d, v%d, v%d" % (vT + 6 + (k & 1), t2 + (k & 1), t2 + (k & 1)))
        else:
            a("v_fmac_f32 v%d, v%d, v%d" % (vT + 6 + (k & 1), t2 + (k & 1), t2 + (k & 1)))
    a("v_add_f32 v%d, v%d, v%d" % (t0, vT + 6, vT + 7))
    wave_sum(t0, sT1)
    for k in range(10):
        a("v_sub_f32 v%d, v%d, v%d" % (vF + k, vF + k, vMEAN))
    a("v_mul_f32 v%d, s%d, v%d" % (t0, sT1, t1))
    a("v_cvt_pk_bf16_f32 v%d, v%d, v%d" % (t0, t0, t0))
    a("v_and_b32 v%d, 0xffff0000, v%d" % (t0, t0))
    a("v_add_f32 v%d, %s, v%d" % (t0, f32(1e-5), t0))
    a("v_cvt_pk_bf16_f32 v%d, v%d, v%d" % (t0, t0, t0))
    a("v_and_b32 v%d, 0xffff0000, v%d" % (t0, t0))
    a("v_sqrt_f32 v%d, v%d" % (t0, t0))
    for k in range(5):
        a("v_cvt_pk_bf16_f32 v%d, v%d, v%d" % (vXS + k, vF + 2 * k, vF + 2 * k + 1))
    a("v_cvt_pk_bf16_f32 v%d, v%d, v%d" % (t0, t0, t0))
    a("v_and_b32 v%d, 0xffff0000, v%d" % (t0, t0))
    a("v_rcp_f32 v%d, v%d" % (t0, t0))
    for k in range(5):
        a("v_lshlrev_b32 v%d, 16, v%d" % (vF + 2 * k, vXS + k))
        a("v_and_b32 v%d, 0xffff0000, v%d" % (vF + 2 * k + 1, vXS + k))
    for k in range(10):
        a("v_mul_f32 v%d, v%d, v%d" % (vF + k, vF + k, t0))
    for k in range(10):
        a("v_cvt_pk_bf16_f32 v%d, v%d, v%d" % (vF + k, vF + k, vF + k))
    a("v_mul_u32_u24 v%d, 52, v%d" % (t0, vLANE))
    a("v_lshrrev_b32 v%d, 8, v%d" % (t0, t0))
    a("v_mul_u32_u24 v%d, 160, v%d" % (t0, t0))
    a("v_lshl_add_u32 v%d, v%d, 5, v%d" % (t0, vLANE, t0))
    a("v_add_u32 v%d, 256, v%d" % (t1, vLANE))
    a("v_mul_u32_u24 v%d, 205, v%d" % (t2, t1))
    a("v_lshrrev_b32 v%d, 12, v%d" % (t2, t2))
    a("v_mul_u32_u24 v%d, 160, v%d" % (t2, t2))
    a("v_lshl_add_u32 v%d, v%d, 3, v%d" % (t1, t1, t2))
    for dup in (0, 160):
        a("ds_write_b128 v%d, %s offset:%d" % (t0, vr(vF), dup))
        a("ds_write_b128 v%d, %s offset:%d" % (t0, vr(vF + 4), dup + 16))
        a("ds_write_b64 v%d, %s offset:%d" % (t1, vr(vF + 8, 2), dup))
    stamp(3)
    a("s_cmp_eq_u32 s%d, 0" % sF)
    a("s_cbranch_scc1 L_LNDONE")
    a("s_waitcnt lgkmcnt(0)")
    a("s_barrier")
    a("s_branch L_WQ")
    a("L_LNDONE:")
    a("s_and_b32 s%d, s2, 15" % sT0)
    stamp(4)
    a("s_setprio 0")
    a("s_mul_i32 s%d, s%d, 320" % (sT0, sT0))
    a("s_lshl_b32 s%d, s%d, 4" % (sT1, sW))
    a("s_add_u32 s%d, s%d, s%d" % (sT0, sT0, sT1))
    a("v_lshl_add_u32 v%d, v%d, 2, s%d" % (vC, vG, sT0))
    a("s_sub_u32 s%d, s2, 160" % sT0)
    a("s_mul_i32 s%d, s%d, 205" % (sT1, sT0))
    a("s_lshr_b32 s%d, s%d, 10" % (sT1, sT1))
    a("s_mul_i32 s%d, s%d, 5" % (sT2, sT1))
    a("s_sub_u32 s%d, s%d, s%d" % (sT2, sT0, sT2))
    a("s_cmp_ge_u32 s2, 230")
    a("s_cselect_b32 s%d, 2, 1" % sROLE)
    a("s_cmp_lt_u32 s2, 160")
    a("s_cselect_b32 s%d, 0, s%d" % (sROLE, sROLE))
    a("s_cselect_b32 s%d, s%d, s%d" % (sRHO, sH, sT1))
    a("s_cselect_b32 s%d, s%d, s%d" % (sC, sSP, sT2))
    a("s_cselect_b32 s%d, 32, 64" % sT0)
    a("s_mov_b32 s%d, %d" % (W2 + 2, 1728 * 1280))
    a("s_cselect_b32 s%d, %d, s%d" % (W2 + 2, 4096 * 1280, W2 + 2))
    a("s_load_dwordx2 s[%d:%d], s[0:1], s%d" % (W2, W2 + 1, sT0))
    def masks():
        a("v_and_b32 v%d, 1, v%d" % (t3, vNN))
        a("v_lshlrev_b32 v%d, 4, v%d" % (t3, t3))
        a("v_mov_b32 v%d, 0xffff" % (vT + 4))
        a("v_lshlrev_b32 v%d, v%d, v%d" % (t3, t3, vT + 4))
        a("v_lshrrev_b32 v%d, 1, v%d" % (vT + 4, vNN))
        for r in range(4):
            a("v_cmp_eq_u32 s[%d:%d], %d, v%d" % (sM + 2 * r, sM + 2 * r + 1, r, vT + 4))
        a("v_lshlrev_b32 v%d, 3, v%d" % (vL8, vLANE))
        a("s_and_b32 s%d, s%d, 3" % (sT0, sW))
        a("s_lshl_b32 s%d, s%d, 9" % (sT0, sT0))
        a("v_lshl_add_u32 v%d, v%d, 4, s%d" % (vPW, vG, sT0))
        a("v_lshl_add_u32 v%d, v%d, 5, v%d" % (vPW, vNN, vPW))
        for r in range(4):
            a("v_cndmask_b32 v%d, 0, v%d, s[%d:%d]" % (vM + r, t3, sM + 2 * r, sM + 2 * r + 1))
    masks()
    a("s_waitcnt lgkmcnt(0)")
    for k in range(5):
        a("ds_read_b128 %s, v%d offset:%d" % (vr(vXN + 4 * k), vB, 16 * k))
    for j in range(3):
        a("ds_read_b32 v%d, v%d offset:%d" % (vXN1 + j, vC, 64 * j))
    a("v_and_b32 v%d, 1, v%d" % (t3, vG))
    a("v_lshlrev_b32 v%d, 3, v%d" % (t3, t3))
    a("v_lshrrev_b32 v%d, 1, v%d" % (t2, vG))
    a("v_add_u32 v%d, v%d, v%d" % (t3, t3, t2))
    a("v_mul_u32_u24 v%d, 1280, v%d" % (vD, t3))
    a("v_add_u32 v%d, v%d, v%d" % (vD, vD, vE))
    a("s_lshl_b32 s%d, s%d, 2" % (sT0, sRHO))
    a("s_add_u32 s%d, s%d, s%d" % (sT0, sT0, sW))
    a("s_mul_i32 s%d, s%d, %d" % (sW2o, sT0, 32 * 1280))
    a("s_lshl_b32 s%d, s%d, 8" % (sT0, sC))
    a("s_add_u32 s%d, s%d, s%d" % (sW2o, sW2o, sT0))
    a("s_cmp_eq_u32 s%d, 2" % sROLE)
    a("s_cselect_b32 s%d, 0x%x, s%d" % (sW2o, OOB, sW2o))
    def mfma_seq(seq, waits=None):
        def build(idx):
            A = vA0 if idx % 2 == 0 else vA1
            for r in range(4):
                a("v_and_b32 v%d, v%d, v%d" % (A + r, vM + r, seq[idx][0]))
        build(0)
        for idx in range(len(seq)):
            if idx + 1 < len(seq): build(idx + 1)
            else: a("s_nop 1")
            A = vA0 if idx % 2 == 0 else vA1
            _, B, acc, first = seq[idx]
            if waits and idx in waits: a(waits[idx])
            a("v_mfma_f32_16x16x32_bf16 %s, %s, %s, %s" % (vr(acc), vr(A), vr(B), "0" if first else vr(acc)))
    a("s_waitcnt vmcnt(24) lgkmcnt(0)")
    mfma_seq([(vXN + i, vWQ + 4 * i, vAQ, i == 0) for i in range(20)])
    for k in range(5):
        a("ds_read_b128 %s, v%d offset:%d" % (vr(vXN + 4 * k), vB, 80 + 16 * k))
    a("s_waitcnt vmcnt(0) lgkmcnt(0)")
    stamp(5)
    a("v_readfirstlane_b32 s%d, v%d" % (sTAG, vEP))
    mfma_seq([(vXN + i, vWQ + 80 + 4 * i, vAQ, False) for i in range(20)] + [(vXN1 + j, vW1 + 4 * j, vAH, j == 0) for j in range(3)])
    a("s_add_u32 s%d, s%d, 1" % (sTAG, sTAG))
    def reduce4(unit, dst):
        for k in range(2):
            a("ds_read2st64_b64 %s, v%d offset0:%d offset1:%d" % (vr(dst + 4 * k), vL8, unit + 2 * k, unit + 2 * k + 1))
        a("s_waitcnt lgkmcnt(1)")
        a("v_pk_add_f32 %s, %s, %s" % (vr(dst, 2), vr(dst, 2), vr(dst + 2, 2)))
        a("s_waitcnt lgkmcnt(0)")
        a("v_pk_add_f32 %s, %s, %s" % (vr(dst + 4, 2), vr(dst + 4, 2), vr(dst + 6, 2)))
        a("v_pk_add_f32 %s, %s, %s" % (vr(dst, 2), vr(dst, 2), vr(dst + 4, 2)))
    def publish(voff, soff, dualst=False):
        a("v_mov_b32 v%d, v%d" % (vR + 2, vR + 1))
        a("v_mov_b32 v%d, s%d" % (vR + 1, sTAG))
        a("v_mov_b32 v%d, s%d" % (vR + 3, sTAG))
        if dualst:
            a("s_add_u32 s%d, s%d, 0x%x" % (sT3, soff, WS_ALT))
            a("buffer_store_dwordx4 %s, v%d, %s, s%d offen" % (vr(vR), voff, srd(WS), sT3))
        a("buffer_store_dwordx4 %s, v%d, %s, s%d offen %s" % (vr(vR), voff, srd(WS), soff, st))
    a("s_cmp_eq_u32 s%d, 0" % sROLE)
    a("s_cbranch_scc1 L_C0")
    a("v_lshrrev_b32 v%d, 5, v%d" % (vT + 5, vLANE))
    a("s_cmp_eq_u32 s%d, 1" % sROLE)
    a("s_cbranch_scc0 L_C2")
    a("v_and_b32 v%d, 7, v%d" % (vT + 6, vLANE))
    a("v_lshl_add_u32 v%d, v%d, 1, v%d" % (vT + 5, vT + 6, vT + 5))
    a("s_lshl_b32 s%d, s%d, 7" % (sT0, sRHO))
    a("s_lshl_b32 s%d, s%d, 5" % (sT1, sW))
    a("s_add_u32 s%d, s%d, s%d" % (sT0, sT0, sT1))
    a("v_add_lshl_u32 v%d, v%d, s%d, 1" % (vT + 5, vT + 5, sT0))
    a("buffer_load_short_d16_hi v%d, v%d, %s, 0 offen" % (vCONST, vT + 5, srd(B1)))
    a("buffer_load_short_d16_hi v%d, v%d, %s, 0 offen offset:32" % (vEP, vT + 5, srd(B1)))
    a("s_branch L_C0")
    a("L_C2:")
    a("s_sub_u32 s%d, s2, 230" % sF)
    a("s_lshl_b32 s%d, s%d, 2" % (sF, sF))
    a("s_add_u32 s%d, s%d, s%d" % (sF, sF, sW))
    a("v_and_b32 v%d, 3, v%d" % (vT + 6, vLANE))
    a("v_lshl_add_u32 v%d, v%d, 1, v%d" % (vT + 5, vT + 6, vT + 5))
    a("s_lshl_b32 s%d, s%d, 3" % (sT0, sF))
    a("v_add_lshl_u32 v%d, v%d, s%d, 1" % (vT + 5, vT + 5, sT0))
    a("buffer_load_ushort v%d, v%d, %s, 0 offen" % (vPF + 1, vT + 5, srd(OUT)))
    a("s_mov_b32 exec_lo, 0x0000ffff")
    a("s_mov_b32 exec_hi, 0x0000ffff")
    a("buffer_load_short_d16_hi v%d, v%d, %s, 0 offen" % (vCONST, vT + 5, srd(X)))
    a("s_not_b64 exec, exec")
    a("buffer_load_short_d16_hi v%d, v%d, %s, 0 offen" % (vCONST, vT + 5, srd(B2)))
    a("s_mov_b64 exec, -1")
    a("L_C0:")
    a("s_mov_b32 exec_hi, 0")
    a("s_nop 4")
    a("ds_write_b128 v%d, %s offset:%d" % (vPW, vr(vAQ), U_QP * 512))
    a("ds_write_b128 v%d, %s offset:%d" % (vPW, vr(vAH), U_HP * 512))
    a("s_mov_b32 exec_hi, -1")
    vGA, vGB, vFA = vA, vB, vC
    a("v_lshrrev_b32 v%d, 3, v%d" % (vGB, vLANE))
    a("v_and_b32 v%d, 7, v%d" % (t3, vLANE))
    a("s_lshl_b32 s%d, s%d, 8" % (sT0, sW))
    a("v_lshl_add_u32 v%d, v%d, 4, s%d" % (vGA, t3, sT0))
    a("v_lshl_add_u32 v%d, v%d, 10, v%d" % (vGA, vGB, vGA))
    a("v_lshlrev_b32 v%d, 4, v%d" % (vGB, vGB))
    a("v_lshrrev_b32 v%d, 2, v%d" % (vFA, vLANE))
    a("v_mul_u32_u24 v%d, 3072, v%d" % (vFA, vFA))
    a("v_and_b32 v%d, 3, v%d" % (t3, vLANE))
    a("v_lshl_add_u32 v%d, v%d, 4, v%d" % (vFA, t3, vFA))
    a("s_mov_b32 s%d, 0x40000" % sSPIN)
    a("v_mov_b32 v%d, %d" % (t0, L_CNT))
    a("v_mov_b32 v%d, 1" % t1)
    a("s_waitcnt lgkmcnt(0)")
    a("s_mov_b64 exec, 1")
    a("ds_add_rtn_u32 v%d, v%d, v%d" % (t2, t0, t1))
    a("s_mov_b64 exec, -1")
    a("s_lshl_b32 s%d, s%d, 13" % (sM, sH))
    a("s_add_u32 s%d, s%d, 0x%x" % (sM, sM, WS_O + (WS_ALT if dual else 0)))
    a("s_lshl_b32 s%d, s%d, 7" % (sM + 1, sH))
    a("s_add_u32 s%d, s%d, 0x%x" % (sM + 1, sM + 1, WS_ML + (WS_ALT if dual else 0)))
    if warm and dual:
        a("s_cmp_lg_u32 s%d, 0" % sROLE)
        a("s_cbranch_scc1 L_NOWARM")
        a("buffer_load_dwordx4 %s, v%d, %s, s%d offen %s" % (vr(vP + 8), vGB, srd(WS), sM + 1, ld))
        a("buffer_load_dwordx4 %s, v%d, %s, s%d offen %s" % (vr(vP), vGA, srd(WS), sM, ld))
        a("buffer_load_dwordx4 %s, v%d, %s, s%d offen offset:128 %s" % (vr(vP + 4), vGA, srd(WS), sM, ld))
        a("L_NOWARM:")
    a("s_waitcnt lgkmcnt(0)")
    a("v_readfirstlane_b32 s%d, v%d" % (sT0, t2))
    a("s_nop 0")
    a("s_cmp_lg_u32 s%d, 3" % sT0)
    a("s_cbranch_scc1 L_NOH")
    reduce4(U_QP, vR)
    a("v_cvt_pk_bf16_f32 v%d, v%d, v%d" % (vR, vR, vR + 1))
    a("v_lshlrev_b32 v%d, 2, v%d" % (t0, vLANE))
    a("ds_write_b32 v%d, v%d offset:%d" % (t0, vR, L_QB))
    a("v_mov_b32 v%d, s%d" % (t1, sTAG))
    a("v_mov_b32 v%d, 0" % t0)
    a("ds_write_b32 v%d, v%d offset:%d" % (t0, t1, L_TAG))
    a("s_cmp_ge_u32 s2, 224")
    a("s_cbranch_scc1 L_NOH")
    reduce4(U_HP, vR)
    a("s_lshl_b32 s%d, s2, 10" % sT0)
    a("s_add_u32 s%d, s%d, 0x%x" % (sT0, sT0, WS_H))
    publish(vL16, sT0)
    a("L_NOH:")
    a("s_waitcnt lgkmcnt(0)")
    stamp(6)
    a("s_barrier")
    def HGATHER():
        a("buffer_load_dwordx4 %s, v%d, %s, s%d offen %s" % (vr(vP), vGA, srd(WS), sM, ld))
        a("buffer_load_dwordx4 %s, v%d, %s, s%d offen offset:128 %s" % (vr(vP + 4), vGA, srd(WS), sM, ld))
        a("buffer_load_dwordx4 %s, v%d, %s, s%d offen %s" % (vr(vP + 8), vGA, srd(WS), sM + 1, ld))
        a("buffer_load_dwordx4 %s, v%d, %s, s%d offen offset:128 %s" % (vr(vP + 12), vGA, srd(WS), sM + 1, ld))
    def w2_loads():
        for u in range(2):
            for i in range(4):
                if (u, i) in ((0, 2), (1, 2)): a("s_add_u32 s%d, s%d, 5120" % (sW2o, sW2o))
                if (u, i) == (1, 0): a("s_add_u32 s%d, s%d, %d" % (sW2o, sW2o, 20480 - 5120))
                a("buffer_load_dwordx4 %s, v%d, %s, s%d offen offset:%d %s" % (vr(vW2 + 16 * u + 4 * i), vD, srd(W2), sW2o, (i % 2) * 2560, nt))
    if w2early: w2_loads()
    a("s_barrier")
    if not w2early: w2_loads()
    a("s_cmp_lg_u32 s%d, 1" % sROLE)
    a("s_cbranch_scc1 L_NOEG")
    a("s_lshl_b32 s%d, s%d, 14" % (sM, sRHO))
    a("s_add_u32 s%d, s%d, 0x%x" % (sM, sM, WS_H))
    a("s_add_u32 s%d, s%d, 0x2000" % (sM + 1, sM))
    HGATHER()
    a("L_NOEG:")
    stamp(7)
    a("s_barrier")
    stamp(9)
    a("s_cmp_eq_u32 s%d, 2" % sROLE)
    a("s_cbranch_scc1 L_FIN")
    a("s_cmp_eq_u32 s%d, 1" % sROLE)
    a("s_cbranch_scc1 L_R1")
    vP0, vP1, vP2, vP3 = vP, vP + 4, vP + 8, vP + 12
    def tagcheck(bufs):
        tmps = []
        n = 0
        for b in bufs:
            for o in (1, 3):
                a("v_xor_b32 v%d, s%d, v%d" % (vT + n, sTAG, b + o)); tmps.append(vT + n); n += 1
        while len(tmps) > 1:
            if len(tmps) >= 3:
                a("v_or3_b32 v%d, v%d, v%d, v%d" % (tmps[0], tmps[0], tmps[1], tmps[2])); tmps = tmps[3:] + [tmps[0]]
            else:
                a("v_or_b32 v%d, v%d, v%d" % (tmps[0], tmps[0], tmps[1])); tmps = [tmps[0]]
        a("v_cmp_ne_u32 vcc, 0, v%d" % tmps[0])
    if stamps:
        a("s_cmp_lt_u32 s%d, 3" % sW)
        a("s_cbranch_scc1 L_POLL0")
        a("s_waitcnt vmcnt(0)")
        stamp(10)
    a("L_POLL0:")
    a("s_sub_u32 s%d, s%d, 1" % (sSPIN, sSPIN))
    a("s_cbranch_scc1 L_EXIT")
    if dual:
        a("s_cmp_eq_u32 s%d, 0x%x" % (sSPIN, 0x40000 - nA))
        a("s_cselect_b32 s%d, 0x%x, 0" % (sT0, WS_ALT))
        a("s_sub_u32 s%d, s%d, s%d" % (sM, sM, sT0))
        a("s_sub_u32 s%d, s%d, s%d" % (sM + 1, sM + 1, sT0))
    a("buffer_load_dwordx4 %s, v%d, %s, s%d offen %s" % (vr(vP2), vGB, srd(WS), sM + 1, ld))
    a("buffer_load_dwordx4 %s, v%d, %s, s%d offen %s" % (vr(vP0), vGA, srd(WS), sM, ld))
    a("buffer_load_dwordx4 %s, v%d, %s, s%d offen offset:128 %s" % (vr(vP1), vGA, srd(WS), sM, ld))
    a("s_waitcnt vmcnt(0)")
    tagcheck([vP0, vP1, vP2])
    a("s_cbranch_vccnz L_POLL0")
    stamp(11)
    def allred(v, tmp, op):
        a("s_nop 1")
        a("v_%s_f32_dpp v%d, v%d, v%d row_ror:8 row_mask:0xf bank_mask:0xf" % (op, v, v, v))
        for sw in ("16", "32"):
            a("v_mov_b32 v%d, v%d" % (tmp, v))
            a("s_nop 1")
            a("v_permlane%s_swap_b32 v%d, v%d" % (sw, v, tmp))
            a("v_%s_f32 v%d, v%d, v%d" % (op, v, v, tmp))
    a("v_mov_b32 v%d, v%d" % (t0, vP2))
    allred(t0, t1, "max")
    a("v_sub_f32 v%d, v%d, v%d" % (t0, vP2, t0))
    a("v_mul_f32 v%d, %s, v%d" % (t0, f32(LOG2E), t0))
    a("v_exp_f32 v%d, v%d" % (t0, t0))
    a("s_nop 0")
    a("v_mul_f32 v%d, v%d, v%d" % (t2, t0, vP2 + 2))
    for b in (vP0, vP1):
        a("v_mul_f32 v%d, v%d, v%d" % (b, b, t0))
        a("v_mul_f32 v%d, v%d, v%d" % (b + 2, b + 2, t0))
    def tred2(extra=None):
        if extra is not None:
            a("v_add_f32_dpp v%d, v%d, v%d row_ror:8 row_mask:0xf bank_mask:0xf" % (extra, extra, extra))
        else:
            a("s_nop 0")
        a("v_permlane32_swap_b32 v%d, v%d" % (vP0, vP0 + 2))
        a("v_permlane32_swap_b32 v%d, v%d" % (vP1, vP1 + 2))
        if extra is not None: a("v_mov_b32 v%d, v%d" % (t3, extra))
        a("v_add_f32 v%d, v%d, v%d" % (vP0, vP0, vP0 + 2))
        a("v_add_f32 v%d, v%d, v%d" % (vP1, vP1, vP1 + 2))
        if extra is not None: a("v_permlane32_swap_b32 v%d, v%d" % (extra, t3))
        a("v_mov_b32 v%d, v%d" % (vP0 + 2, vP0))
        a("v_mov_b32 v%d, v%d" % (vP1 + 2, vP1))
        if extra is not None:
            a("v_add_f32 v%d, v%d, v%d" % (extra, extra, t3))
            a("v_mov_b32 v%d, v%d" % (t3, extra))
        else:
            a("s_nop 0")
        a("v_permlane16_swap_b32 v%d, v%d" % (vP0, vP0 + 2))
        a("v_permlane16_swap_b32 v%d, v%d" % (vP1, vP1 + 2))
        if extra is not None: a("v_permlane16_swap_b32 v%d, v%d" % (extra, t3))
        a("v_add_f32 v%d, v%d, v%d" % (vP0, vP0, vP0 + 2))
        a("v_add_f32 v%d, v%d, v%d" % (vP1, vP1, vP1 + 2))
        if extra is not None:
            a("v_add_f32 v%d, v%d, v%d" % (extra, extra, t3))
            a("v_rcp_f32 v%d, v%d" % (extra, extra))
        else:
            a("s_nop 0")
        a("v_add_f32_dpp v%d, v%d, v%d row_ror:8 row_mask:0xf bank_mask:0xf" % (vP0, vP0, vP0))
        a("v_add_f32_dpp v%d, v%d, v%d row_ror:8 row_mask:0xf bank_mask:0xf" % (vP1, vP1, vP1))
    tred2(t2)
    a("v_mul_f32 v%d, v%d, v%d" % (vP0, vP0, t2))
    a("v_mul_f32 v%d, v%d, v%d" % (vP1, vP1, t2))
    a("s_branch L_GEMV2")
    a("L_POLL1:")
    a("s_sub_u32 s%d, s%d, 1" % (sSPIN, sSPIN))
    a("s_cbranch_scc1 L_EXIT")
    HGATHER()
    a("L_R1:")
    a("s_waitcnt vmcnt(0)")
    tagcheck([vP0, vP1, vP2, vP3])
    a("s_cbranch_vccnz L_POLL1")
    stamp(11)
    a("v_add_f32 v%d, v%d, v%d" % (vP0, vP0, vP2))
    a("v_add_f32 v%d, v%d, v%d" % (vP0 + 2, vP0 + 2, vP2 + 2))
    a("v_add_f32 v%d, v%d, v%d" % (vP1, vP1, vP3))
    a("v_add_f32 v%d, v%d, v%d" % (vP1 + 2, vP1 + 2, vP3 + 2))
    a("s_nop 0")
    tred2()
    k0 = -2.0 * 0.7978845608028654 * LOG2E
    for (b, cst, ta, tb) in ((vP0, vCONST, t0, t1), (vP1, vEP, t2, t3)):
        a("v_cvt_pk_bf16_f32 v%d, v%d, v%d" % (b, b, b))
        a("v_and_b32 v%d, 0xffff0000, v%d" % (b, b))
        a("v_and_b32 v%d, 0xffff0000, v%d" % (cst, cst))
        a("v_add_f32 v%d, v%d, v%d" % (b, b, cst))
        a("v_cvt_pk_bf16_f32 v%d, v%d, v%d" % (b, b, b))
        a("v_and_b32 v%d, 0xffff0000, v%d" % (b, b))
        a("v_mul_f32 v%d, v%d, v%d" % (ta, b, b))
        a("v_mov_b32 v%d, %s" % (tb, f32(k0)))
        a("v_fmac_f32 v%d, %s, v%d" % (tb, f32(k0 * 0.044715), ta))
        a("v_mul_f32 v%d, v%d, v%d" % (ta, tb, b))
        a("v_exp_f32 v%d, v%d" % (ta, ta))
        a("s_nop 0")
        a("v_add_f32 v%d, 1.0, v%d" % (ta, ta))
        a("v_rcp_f32 v%d, v%d" % (ta, ta))
        a("s_nop 0")
        a("v_mul_f32 v%d, v%d, v%d" % (b, b, ta))
    a("s_lshl_b32 s%d, s%d, 2" % (sT0, sRHO))
    a("s_add_u32 s%d, s%d, s%d" % (sT0, sT0, sW))
    a("s_cmp_lt_u32 s%d, 54" % sT0)
    a("s_cbranch_scc1 L_R1B")
    a("v_mov_b32 v%d, 0" % vP0)
    a("v_mov_b32 v%d, 0" % vP1)
    a("L_R1B:")
    a("s_add_u32 s%d, s%d, 32" % (sRHO, sRHO))
    a("L_GEMV2:")
    a("v_cvt_pk_bf16_f32 v%d, v%d, v%d" % (vP0, vP0, vP0))
    a("v_cvt_pk_bf16_f32 v%d, v%d, v%d" % (vP1, vP1, vP1))
    a("s_mul_i32 s%d, s%d, %d" % (sT0, sC, 16 * 3072))
    a("v_mov_b32_dpp v%d, v%d row_ror:4 row_mask:0xa bank_mask:0xf" % (vP0, vP0))
    a("v_mov_b32_dpp v%d, v%d row_ror:4 row_mask:0xa bank_mask:0xf" % (vP1, vP1))
    a("s_lshl_b32 s%d, s%d, 6" % (sT1, sRHO))
    for k in range(8):
        for r in range(4):
            a("v_and_b32_dpp v%d, v%d, v%d row_newbcast:%d row_mask:0xf bank_mask:0xf" % (vPA2 + 4 * k + r, vP0 if k < 4 else vP1, vM + r, k % 4))
        if k >= 1:
            a("v_mfma_f32_16x16x32_bf16 %s, %s, %s, %s" % (vr(vAQ), vr(vPA2 + 4 * (k - 1)), vr(vW2 + 4 * (k - 1)), "0" if k == 1 else vr(vAQ)))
    a("s_add_u32 s%d, s%d, s%d" % (sT0, sT0, sT1))
    a("s_add_u32 s%d, s%d, 0x%x" % (sT0, sT0, WS_F))
    a("v_mfma_f32_16x16x32_bf16 %s, %s, %s, %s" % (vr(vAQ), vr(vPA2 + 28), vr(vW2 + 28), vr(vAQ)))
    a("s_mov_b32 exec_hi, 0")
    a("s_nop 6")
    a("ds_write_b128 v%d, %s offset:%d" % (vPW, vr(vAQ), U_FP * 512))
    a("s_mov_b32 exec_hi, -1")
    a("s_waitcnt lgkmcnt(0)")
    a("s_barrier")
    stamp(12)
    a("s_cmp_lg_u32 s%d, 0" % sW)
    a("s_cbranch_scc1 L_EXIT")
    reduce4(U_FP, vR)
    publish(vFA, sT0)
    a("s_branch L_EXIT")
    a("L_FIN:")
    a("s_cmp_ge_u32 s%d, 80" % sF)
    a("s_cbranch_scc1 L_EXIT")
    a("s_mul_i32 s%d, s%d, 3072" % (sT0, sF))
    a("s_add_u32 s%d, s%d, 0x%x" % (sT0, sT0, WS_F))
    a("v_lshrrev_b32 v%d, 5, v%d" % (vT + 5, vLANE))
    a("v_and_b32 v%d, 3, v%d" % (vT + 6, vLANE))
    a("v_lshl_add_u32 v%d, v%d, 1, v%d" % (vT + 5, vT + 6, vT + 5))
    a("s_lshl_b32 s%d, s%d, 3" % (sT1, sF))
    a("v_add_lshl_u32 v%d, v%d, s%d, 1" % (vPF, vT + 5, sT1))
    a("v_mov_b32 v%d, 0" % vP2)
    a("v_mov_b32 v%d, s%d" % (vP2 + 1, sTAG))
    a("v_mov_b32 v%d, 0" % (vP2 + 2))
    a("v_mov_b32 v%d, s%d" % (vP2 + 3, sTAG))
    a("s_waitcnt vmcnt(0)")
    a("v_and_b32 v%d, 0xffff0000, v%d" % (vCONST, vCONST))
    a("L_POLL2:")
    a("s_sub_u32 s%d, s%d, 1" % (sSPIN, sSPIN))
    a("s_cbranch_scc1 L_EXIT")
    a("buffer_load_dwordx4 %s, v%d, %s, s%d offen %s" % (vr(vP0), vL16, srd(WS), sT0, ld))
    a("buffer_load_dwordx4 %s, v%d, %s, s%d offen offset:1024 %s" % (vr(vP1), vL16, srd(WS), sT0, ld))
    a("s_mov_b32 exec_hi, 0x00ffffff")
    a("buffer_load_dwordx4 %s, v%d, %s, s%d offen offset:2048 %s" % (vr(vP2), vL16, srd(WS), sT0, ld))
    a("s_mov_b32 exec_hi, -1")
    a("s_waitcnt vmcnt(0)")
    tagcheck([vP0, vP1, vP2])
    a("s_cbranch_vccnz L_POLL2")
    stamp(12)
    a("v_add_f32 v%d, v%d, v%d" % (vP0, vP0, vP1))
    a("v_add_f32 v%d, v%d, v%d" % (vP0 + 2, vP0 + 2, vP1 + 2))
    a("v_permlane32_swap_b32 v%d, v%d" % (vP2, vP2 + 2))
    a("v_add_f32 v%d, v%d, v%d" % (vP2, vP2, vP2 + 2))
    a("v_permlane32_swap_b32 v%d, v%d" % (vP0, vP0 + 2))
    a("v_add_f32 v%d, v%d, v%d" % (vP0, vP0, vP0 + 2))
    a("s_nop 1")
    a("v_permlane16_swap_b32 v%d, v%d" % (vP0, vP2))
    a("v_add_f32 v%d, v%d, v%d" % (vP0, vP0, vP2))
    a("s_nop 1")
    a("v_add_f32_dpp v%d, v%d, v%d row_ror:4 row_mask:0xf bank_mask:0xf" % (vP0, vP0, vP0))
    a("s_nop 1")
    a("v_add_f32_dpp v%d, v%d, v%d row_ror:8 row_mask:0xf bank_mask:0xf" % (vP0, vP0, vP0))
    a("v_cvt_pk_bf16_f32 v%d, v%d, v%d" % (vP0, vP0, vP0))
    a("v_and_b32 v%d, 0xffff0000, v%d" % (vP0, vP0))
    a("v_add_f32 v%d, v%d, v%d" % (vP0, vP0, vCONST))
    a("v_cvt_pk_bf16_f32 v%d, v%d, v%d" % (vP0, vP0, vP0))
    a("v_and_b32 v%d, 0xffff0000, v%d" % (vP0, vP0))
    a("v_mov_b32 v%d, v%d" % (t1, vP0))
    a("s_nop 1")
    a("v_permlane16_swap_b32 v%d, v%d" % (vP0, t1))
    a("v_add_f32 v%d, v%d, v%d" % (vP0, vP0, t1))
    a("v_cvt_pk_bf16_f32 v%d, v%d, v%d" % (vP0, vP0, vP0))
    a("s_mov_b32 exec_lo, 0xf")
    a("s_mov_b32 exec_hi, 0xf")
    a("buffer_store_short v%d, v%d, %s, 0 offen" % (vP0, vPF, srd(OUT)))
    a("s_cmp_lg_u32 s%d, 0" % sF)
    a("s_cbranch_scc1 L_EXIT")
    a("s_mov_b64 exec, 1")
    a("v_mov_b32 v%d, 0" % t0)
    a("v_mov_b32 v%d, s%d" % (t1, sTAG))
    a("buffer_store_dword v%d, v%d, %s, 0 offen offset:%d sc1" % (t1, t0, srd(WS), WS_EPOCH))
    a("s_branch L_EXIT")
    a("L_KV:")
    if prefetch:
        a("s_cmp_lt_u32 s2, 232")
        a("s_cbranch_scc1 L_NOPF")
        a("s_cmp_lg_u32 s%d, 4" % sW)
        a("s_cbranch_scc1 L_NOPF")
        a("s_getpc_b64 s[%d:%d]" % (sM, sM + 1))
        a("L_PC:")
        a("s_sub_u32 s%d, s%d, L_PC-L_AUX0" % (sM, sM))
        a("s_subb_u32 s%d, s%d, 0" % (sM + 1, sM + 1))
        for i in range(codekb):
            if i and i % 4 == 0:
                a("s_add_u32 s%d, s%d, 4096" % (sM, sM)); a("s_addc_u32 s%d, s%d, 0" % (sM + 1, sM + 1))
            a("global_load_dwordx4 %s, v%d, s[%d:%d] offset:%d" % (vr(vPF), vL16, sM, sM + 1, (i % 4) * 1024))
        a("L_NOPF:")
    a("s_setprio 1")
    a("s_mov_b32 s%d, 0x%x" % (K + 2, 64 << 20))
    a("s_mov_b32 s%d, 0x%x" % (V + 2, 64 << 20))
    a("s_mov_b32 s%d, 0x%x" % (WS + 2, 256 << 20))
    a("s_lshl_b32 s%d, s%d, 21" % (sKV, sH))
    a("s_lshl_b32 s%d, s%d, 16" % (sT0, sSP))
    a("s_add_u32 s%d, s%d, s%d" % (sKV, sKV, sT0))
    a("s_lshl_b32 s%d, s%d, 14" % (sT0, sW))
    a("s_add_u32 s%d, s%d, s%d" % (sKV, sKV, sT0))
    a("s_add_u32 s%d, s%d, 0x%x" % (sKV, sKV, 0x180000 - 4 * 16384))
    for j in range(1, 4):
        a("s_add_u32 s%d, s%d, 0x%x" % (sKV + j, sKV, 4096 * j))
    a("v_lshrrev_b32 v%d, 2, v%d" % (t3, vNN))
    a("v_lshlrev_b32 v%d, 8, v%d" % (vA, t3))
    a("v_lshl_add_u32 v%d, v%d, 6, v%d" % (vA, vG, vA))
    a("v_and_b32 v%d, 3, v%d" % (t3, vNN))
    a("v_lshl_add_u32 v%d, v%d, 4, v%d" % (vA, t3, vA))
    a("v_lshl_add_u32 v%d, v%d, 10, v%d" % (vB, vG, vE))
    a("v_lshlrev_b32 v%d, 4, v%d" % (vC, t3))
    a("v_lshl_add_u32 v%d, v%d, 6, v%d" % (vC, vG, vC))
    a("s_waitcnt lgkmcnt(0)")
    def kvload(n):
        if n < 16:
            L = n
            a("buffer_load_dwordx4 %s, v%d, %s, s%d offen offset:%d %s" % (vr(vK + 4 * L), vA, srd(K), sKV + L // 4, (L % 4) * 1024, nt))
        else:
            L = n - 16
            a("buffer_load_dwordx4 %s, v%d, %s, s%d offen offset:%d %s" % (vr(vV + 4 * L), vB, srd(V), sKV + L // 4, (L % 4) * 256, nt))
    a("s_bitcmp1_b32 s%d, %d" % (sSP, tbit))
    if not stag: a("s_cmp_eq_u32 s2, 9999")
    a("s_cbranch_scc1 L_KB")
    a("s_barrier")
    a("s_barrier")
    a("L_KB:")
    for n in range(kfirst): kvload(n)
    a("s_cbranch_scc0 L_KC")
    a("s_barrier")
    a("s_barrier")
    a("L_KC:")
    for n in range(kfirst, 32):
        if n == 16:
            stamp(1)
            a("s_setprio 0")
        kvload(n)
    stamp(4)
    a("s_setprio 1")
    masks()
    stamp(2)
    for r in range(16):
        a("v_mov_b32 v%d, 0" % (vAT + r))
    stamp(5)
    a("s_barrier")
    stamp(6)
    for t in range(4):
        a("s_mov_b32 exec_lo, 0x%08x" % (0x000f000f << (4 * t)))
        a("s_mov_b32 exec_hi, 0x%08x" % (0x000f000f << (4 * t)))
        a("ds_read_b128 %s, v%d offset:%d" % (vr(vAT + 4 * t), vC, L_QB))
    a("s_mov_b64 exec, -1")
    a("v_mov_b32 v%d, 0" % vD)
    a("ds_read_b32 v%d, v%d offset:%d" % (vEP, vD, L_TAG))
    a("s_waitcnt vmcnt(16) lgkmcnt(1)")
    for L in range(16):
        acc = vS + 4 * (L // 4)
        a("v_mfma_f32_16x16x32_bf16 %s, %s, %s, %s" % (vr(acc), vr(vAT + 4 * (L % 4)), vr(vK + 4 * L), "0" if L % 4 == 0 else vr(acc)))
    sc = [vT + 8, vT + 9, vT + 10, vT + 11]
    for k in range(4):
        for j in range(4):
            if k == 0:
                if j == 2: a("s_nop 1")
                if j == 3: a("s_nop 2")
                a("v_mov_b32_dpp v%d, v%d quad_perm:[0,0,0,0] row_mask:0xf bank_mask:0xf" % (sc[j], vS + 4 * j))
            else:
                a("v_add_f32_dpp v%d, v%d, v%d quad_perm:[%d,%d,%d,%d] row_mask:0xf bank_mask:0xf" % (sc[j], vS + 4 * j + k, sc[j], k, k, k, k))
    for rnd in range(2):
        a("v_cvt_pk_bf16_f32 v%d, v%d, v%d" % (t0, sc[0], sc[1]))
        a("v_cvt_pk_bf16_f32 v%d, v%d, v%d" % (t1, sc[2], sc[3]))
        a("v_lshlrev_b32 v%d, 16, v%d" % (sc[0], t0))
        a("v_and_b32 v%d, 0xffff0000, v%d" % (sc[1], t0))
        a("v_lshlrev_b32 v%d, 16, v%d" % (sc[2], t1))
        a("v_and_b32 v%d, 0xffff0000, v%d" % (sc[3], t1))
        if rnd == 0:
            for j in range(4):
                a("v_mul_f32 v%d, %s, v%d" % (sc[j], f32(128 ** -0.5), sc[j]))
    a("v_max_f32 v%d, v%d, v%d" % (t2, sc[0], sc[1]))
    a("v_max3_f32 v%d, v%d, v%d, v%d" % (t2, sc[2], sc[3], t2))
    a("v_mov_b32 v%d, %d" % (t3, L_MX))
    a("s_mov_b32 exec_lo, 0x11111111")
    a("s_mov_b32 exec_hi, 0x11111111")
    a("ds_max_f32 v%d, v%d" % (t3, t2))
    a("s_mov_b64 exec, -1")
    a("s_waitcnt lgkmcnt(0)")
    a("s_barrier")
    vMX = vT + 4
    a("ds_read_b32 v%d, v%d" % (vMX, t3))
    stamp(7)
    a("s_waitcnt lgkmcnt(0)")
    for j in range(4): a("v_sub_f32 v%d, v%d, v%d" % (sc[j], sc[j], vMX))
    for j in range(4): a("v_mul_f32 v%d, %s, v%d" % (sc[j], f32(LOG2E), sc[j]))
    for j in range(4): a("v_exp_f32 v%d, v%d" % (sc[j], sc[j]))
    a("v_add_f32 v%d, v%d, v%d" % (t2, sc[0], sc[1]))
    a("v_add_f32 v%d, v%d, v%d" % (t1, sc[2], sc[3]))
    for j in range(4): a("v_cvt_pk_bf16_f32 v%d, v%d, v%d" % (sc[j], sc[j], sc[j]))
    a("v_add_f32 v%d, v%d, v%d" % (t2, t2, t1))
    pa = [(aa, i, r) for aa in range(4) for i in range(4) for r in range(4)]
    def pab(n):
        for _ in range(n):
            aa, i, r = pa.pop(0)
            a("v_and_b32_dpp v%d, v%d, v%d row_newbcast:%d row_mask:0xf bank_mask:0xf" % (vK + 16 * aa + 4 * i + r, sc[aa], vM + r, 4 * i))
    pab(2)
    for ctl in ("row_ror:4 row_mask:0xf", "row_ror:8 row_mask:0xf", "row_bcast:15 row_mask:0xa", "row_bcast:31 row_mask:0xc"):
        a("v_add_f32_dpp v%d, v%d, v%d %s bank_mask:0xf" % (t2, t2, t2, ctl))
        pab(2)
    a("s_lshl_b32 s%d, s%d, 2" % (sT0, sW))
    a("v_mov_b32 v%d, s%d" % (t3, sT0))
    a("s_mov_b32 exec_lo, 0")
    a("s_mov_b32 exec_hi, 0x80000000")
    a("ds_write_b32 v%d, v%d offset:%d" % (t3, t2, L_LS - 16))
    a("s_mov_b64 exec, -1")
    pab(len(pa))
    vRk = 36
    a("v_mov_b32 v%d, v%d" % (vRk + 9, vEP))
    a("v_mov_b32 v%d, v%d" % (vRk + 11, vEP))
    a("s_lshl_b32 s%d, s%d, 3" % (sT1, sH))
    a("s_add_u32 s%d, s%d, s%d" % (sT1, sT1, sSP))
    a("s_lshl_b32 s%d, s%d, 10" % (sT0, sT1))
    a("s_add_u32 s%d, s%d, 0x%x" % (sT0, sT0, WS_O))
    a("s_lshl_b32 s%d, s%d, 4" % (sT1, sT1))
    a("s_add_u32 s%d, s%d, 0x%x" % (sT1, sT1, WS_ML))
    a("s_cmp_eq_u32 s%d, 5" % sW)
    a("s_cselect_b32 s%d, s%d, s%d" % (sT0, sT1, sT0))
    a("s_add_u32 s%d, s%d, 0x%x" % (sT1, sT0, WS_ALT))
    stamp(8)
    for k in range(16):
        a("s_waitcnt vmcnt(%d)" % (15 - k))
        a("v_mfma_f32_16x16x32_bf16 %s, %s, %s, %s" % (vr(vO), vr(vK + 4 * k), vr(vV + 4 * k), "0" if k == 0 else vr(vO)))
    a("s_mov_b32 exec_hi, 0")
    a("s_nop 6")
    a("ds_write_b128 v%d, %s offset:%d" % (vPW, vr(vO), U_OP * 512))
    a("s_mov_b32 exec_hi, -1")
    a("s_waitcnt lgkmcnt(0)")
    a("s_barrier")
    stamp(9)
    a("s_cmp_gt_u32 s%d, 5" % sW)
    a("s_cbranch_scc1 L_EXIT")
    a("s_cmp_eq_u32 s%d, 5" % sW)
    a("s_cbranch_scc1 L_ML")
    for k in range(2):
        a("ds_read2st64_b64 %s, v%d offset0:%d offset1:%d" % (vr(vRk + 4 * k), vL8, U_OP + 2 * k, U_OP + 2 * k + 1))
    a("s_waitcnt lgkmcnt(1)")
    a("v_pk_add_f32 %s, %s, %s" % (vr(vRk, 2), vr(vRk, 2), vr(vRk + 2, 2)))
    a("s_waitcnt lgkmcnt(0)")
    a("v_pk_add_f32 %s, %s, %s" % (vr(vRk + 4, 2), vr(vRk + 4, 2), vr(vRk + 6, 2)))
    a("v_add_f32 v%d, v%d, v%d" % (vRk + 8, vRk, vRk + 4))
    a("v_add_f32 v%d, v%d, v%d" % (vRk + 10, vRk + 1, vRk + 5))
    def pub2(voff):
        if dual: a("buffer_store_dwordx4 %s, v%d, %s, s%d offen" % (vr(vRk + 8), voff, srd(WS), sT1))
        a("buffer_store_dwordx4 %s, v%d, %s, s%d offen %s" % (vr(vRk + 8), voff, srd(WS), sT0, st))
    pub2(vL16)
    a("s_branch L_EXIT")
    a("L_ML:")
    a("ds_read_b128 %s, v%d offset:%d" % (vr(vRk), vD, L_LS))
    a("v_mov_b32 v%d, v%d" % (vRk + 8, vMX))
    a("s_mov_b64 exec, 1")
    a("s_waitcnt lgkmcnt(0)")
    a("v_pk_add_f32 %s, %s, %s" % (vr(vRk, 2), vr(vRk, 2), vr(vRk + 2, 2)))
    a("v_add_f32 v%d, v%d, v%d" % (vRk + 10, vRk, vRk + 1))
    pub2(vD)
    a("L_EXIT:")
    if stamps:
        a("s_waitcnt vmcnt(0)")
        stamp(13)
        a("s_waitcnt lgkmcnt(0)")
        a("s_lshl_b32 s%d, s2, 3" % sT0)
        a("s_add_u32 s%d, s%d, s%d" % (sT0, sT0, sW))
        a("s_lshl_b32 s%d, s%d, 7" % (sT0, sT0))
        a("s_add_u32 s%d, s%d, 0x%x" % (sT0, sT0, WS_ST))
        a("s_mov_b64 exec, 1")
        a("v_mov_b32 v1, 0")
        for i in range(16):
            if i < NST:
                a("v_mov_b32 v2, s%d" % (72 + 2 * i)); a("v_mov_b32 v3, s%d" % (73 + 2 * i))
            else:
                a("v_mov_b32 v2, 0"); a("v_mov_b32 v3, 0")
            a("buffer_store_dwordx2 v[2:3], v1, %s, s%d offen offset:%d" % (srd(WS), sT0, i * 8))
            a("s_nop 1")
    a("L_END:")
    a("s_endpgm")
    body = a.text()
    errs = hazard.check(body)
    if errs:
        print("\n".join(errs)); raise SystemExit("hazards")
    return wrap(body, 256, 512, LDS_BYTES, NV, sgpr=102)

if __name__ == "__main__":
    open("k6.s", "w").write(gen(codekb=8, qnt="", w2early=True, warm=False))
    open("k6s.s", "w").write(gen(stamps=True, qnt="", codekb=8, w2early=True, warm=False))
    open("k6s_late.s", "w").write(gen(stamps=True, qnt="", codekb=8, w2early=False, warm=False))
    open("k6s_warm.s", "w").write(gen(stamps=True, qnt="", codekb=8, w2early=True, warm=True))
    open("k6s_nont.s", "w").write(gen(stamps=True, qnt="", nt="", codekb=8, w2early=True, warm=False))
    open("k6_nont.s", "w").write(gen(qnt="", nt="", codekb=8, w2early=True, warm=False))
    open("k6_allnt.s", "w").write(gen(codekb=8, w2early=True, warm=False))
```

```python
import sys, struct
from glib import *
import hazard

def f32(x):
    return "0x%08x" % struct.unpack("<I", struct.pack("<f", x))[0]

WS_EPOCH = 0
WS_ML = 0x1000
WS_O = 0x10000
WS_H = 0x50000
WS_F = 0x90000
WS_ALT = 0x100000
WS_ST = 0x8000000
U_XN, U_QP, U_HP, U_OP, U_FP, U_MISC = 0, 10, 14, 18, 22, 26
L_QB = U_MISC * 512
L_MX = L_QB + 256
L_LS = L_QB + 272
L_CNT = L_QB + 260
L_TAG = L_QB + 264
LDS_BYTES = L_QB + 512
OOB = 0x7ff00000
NST = 14
LOG2E = 1.4426950408889634

def gen(stamps=False, prefetch=True, codekb=6, nt="nt", qnt="nt", dual=True, st="sc1", ld="sc1", w2early=False, stag=True, kfirst=16, vfirst=0, tbit=0, warm=True, nA=32):
    a = Asm()
    def stamp(k):
        if stamps: a("s_memrealtime s[%d:%d]" % (72 + 2 * k, 73 + 2 * k))
    X, K, V, WQ, W2, W1, B1, B2, OUT, WS = 4, 8, 12, 16, 20, 24, 28, 32, 36, 40
    sH, sSP, sW, sROLE, sTAG, sT0, sT1, sT2, sRHO, sC, sSPIN, sQ, sW1o, sW2o, sF, sT3 = 44, 45, 46, 47, 48, 50, 51, 52, 53, 54, 55, 56, 57, 58, 59, 49
    sM = 60
    sKV = 68
    def srd(n): return "s[%d:%d]" % (n, n + 3)
    def vr(n, c=4): return "v[%d:%d]" % (n, n + c - 1)
    vLANE, vG, vNN = 1, 2, 3
    vT = 4
    t0, t1, t2, t3 = vT, vT + 1, vT + 2, vT + 3
    vM = 16
    vA, vB, vC, vD, vPW, vL8, vL16, vE, vCONST, vEP = 20, 21, 22, 23, 24, 25, 26, 27, 28, 29
    vXS = 30
    vXN = 36
    vXN1 = 56
    vA0, vA1 = 60, 64
    vAQ, vAH = 68, 72
    vW1 = 76
    vWQ = 88
    vW2 = 88
    vPA2 = 120
    vP = 152
    vR = 36
    vPF = 248
    NV = 252
    vK = 88
    vV = 152
    vAT = 36
    vS = 60
    vO = 76

    a("s_cmp_ge_u32 s2, 256")
    a("s_cbranch_scc1 L_END")
    if stamps:
        for k in range(NST): a("s_mov_b64 s[%d:%d], 0" % (72 + 2 * k, 73 + 2 * k))
    stamp(0)
    for (r, off) in ((WQ, 24), (X, 0), (K, 8), (V, 16), (WS, 96), (W1, 48), (B1, 56), (B2, 72), (OUT, 80)):
        a("s_load_dwordx2 s[%d:%d], s[0:1], %d" % (r, r + 1, off))
    a("v_and_b32 v%d, 63, v0" % vLANE)
    a("v_lshrrev_b32 v%d, 6, v0" % vT)
    a("v_lshlrev_b32 v%d, 4, v%d" % (vL16, vLANE))
    a("v_readfirstlane_b32 s%d, v%d" % (sW, vT))
    a("s_and_b32 s%d, s2, 31" % sH)
    a("s_lshr_b32 s%d, s2, 5" % sSP)
    a("v_lshrrev_b32 v%d, 4, v%d" % (vG, vLANE))
    a("v_and_b32 v%d, 15, v%d" % (vNN, vLANE))
    a("v_lshlrev_b32 v%d, 4, v%d" % (vE, vNN))
    for r in (WQ, X, K, V, WS, W1, B1, B2, OUT, W2):
        a("s_mov_b32 s%d, 0x20000" % (r + 3))
    a("s_cmp_ge_u32 s%d, 4" % sW)
    a("s_cbranch_scc1 L_KV")
    a("L_AUX0:")
    a("s_setprio 2")
    a("s_mov_b32 s%d, 0x%x" % (WQ + 2, 640 * 8192))
    a("s_mov_b32 s%d, 1280" % (X + 2))
    a("s_lshl_b32 s%d, s%d, 2" % (sT0, sW))
    a("v_add_u32 v%d, s%d, v%d" % (t3, sT0, vG))
    a("v_mul_u32_u24 v%d, %d, v%d" % (vA, 40 * 8192, t3))
    a("v_add_u32 v%d, v%d, v%d" % (vA, vA, vE))
    a("v_mul_u32_u24 v%d, 320, v%d" % (vB, t3))
    a("s_lshl_b32 s%d, s%d, 4" % (sT0, sSP))
    a("v_add_u32 v%d, s%d, v%d" % (vB, sT0, vB))
    a("s_lshl_b32 s%d, s%d, 8" % (sQ, sH))
    a("s_lshl_b32 s%d, s%d, 15" % (sT0, sSP))
    a("s_add_u32 s%d, s%d, s%d" % (sQ, sQ, sT0))
    a("v_lshlrev_b32 v%d, 2, v%d" % (t1, vLANE))
    a("v_mov_b32 v%d, 0xff800000" % t2)
    a("v_mov_b32 v%d, 0" % t3)
    a("v_mov_b32 v%d, %d" % (t0, L_MX))
    a("ds_write_b64 v%d, %s" % (t0, vr(t2, 2)))
    a("s_waitcnt lgkmcnt(0)")
    stamp(8)
    a("buffer_load_dwordx4 %s, v%d, %s, 0 offen" % (vr(vXS), vL16, srd(X)))
    a("buffer_load_dword v%d, v%d, %s, 0 offen offset:1024" % (vXS + 4, t1, srd(X)))
    def wq_loads(k0, k1):
        for k in range(k0, k1):
            if k and k % 4 == 0 and k >= 12:
                a("s_cmp_ge_u32 s%d, 0x%x" % (sQ, 40 * 8192))
                a("s_cselect_b32 s%d, 0x%x, 0" % (sT0, 40 * 8192))
                a("s_sub_u32 s%d, s%d, s%d" % (sQ, sQ, sT0))
            a("buffer_load_dwordx4 %s, v%d, %s, s%d offen %s" % (vr(vWQ + 4 * k), vA, srd(WQ), sQ, qnt))
            if k < 39: a("s_addk_i32 s%d, 0x2000" % sQ)
    def W1LOADS():
        for (r, n) in ((WS, 256 << 20), (W1, 640 * 3456), (B1, 3456), (B2, 1280), (OUT, 1280)):
            a("s_mov_b32 s%d, 0x%x" % (r + 2, n))
        a("s_and_b32 s%d, s2, 15" % sT0)
        a("s_mul_i32 s%d, s%d, 10" % (sT1, sT0))
        a("s_add_u32 s%d, s%d, s%d" % (sT1, sT1, sW))
        a("s_mul_i32 s%d, s%d, %d" % (sW1o, sT1, 4 * 3456))
        a("s_lshr_b32 s%d, s2, 4" % sT1)
        a("s_lshl_b32 s%d, s%d, 8" % (sT1, sT1))
        a("s_add_u32 s%d, s%d, s%d" % (sW1o, sW1o, sT1))
        a("s_cmp_ge_u32 s2, 224")
        a("s_cselect_b32 s%d, 0x%x, s%d" % (sW1o, OOB, sW1o))
        a("v_mul_u32_u24 v%d, 3456, v%d" % (vC, vG))
        a("v_add_u32 v%d, v%d, v%d" % (vC, vC, vE))
        a("buffer_load_dwordx4 %s, v%d, %s, s%d offen %s" % (vr(vW1), vC, srd(W1), sW1o, nt))
        a("s_add_u32 s%d, s%d, %d" % (sW1o, sW1o, 16 * 3456))
        a("buffer_load_dwordx4 %s, v%d, %s, s%d offen %s" % (vr(vW1 + 4), vC, srd(W1), sW1o, nt))
        a("s_add_u32 s%d, s%d, %d" % (sW1o, sW1o, 16 * 3456))
        a("s_cmp_ge_u32 s%d, 2" % sW)
        a("s_cselect_b32 s%d, 0x%x, s%d" % (sW1o, OOB, sW1o))
        a("buffer_load_dwordx4 %s, v%d, %s, s%d offen %s" % (vr(vW1 + 8), vC, srd(W1), sW1o, nt))
        a("v_mov_b32 v%d, 0" % t3)
        a("buffer_load_dword v%d, v%d, %s, 0 offen offset:%d sc1" % (vEP, t3, srd(WS), WS_EPOCH))
    a("s_bitcmp1_b32 s%d, %d" % (sSP, tbit))
    if not stag: a("s_cmp_eq_u32 s2, 9999")
    a("s_cselect_b32 s%d, 1, 0" % sF)
    a("s_cbranch_scc0 L_WQ")
    a("s_waitcnt vmcnt(0)")
    a("s_branch L_LN")
    a("L_WQ:")
    wq_loads(0, 40)
    W1LOADS()
    stamp(1)
    a("s_barrier")
    a("s_cmp_eq_u32 s%d, 1" % sF)
    a("s_cbranch_scc1 L_LNDONE")
    a("s_barrier")
    a("L_LN:")
    vF = vXN
    a("s_waitcnt vmcnt(44)")
    stamp(2)
    for k in range(5):
        a("v_lshlrev_b32 v%d, 16, v%d" % (vF + 2 * k, vXS + k))
        a("v_and_b32 v%d, 0xffff0000, v%d" % (vF + 2 * k + 1, vXS + k))
    a("v_pk_add_f32 %s, %s, %s" % (vr(t0, 2), vr(vF, 2), vr(vF + 2, 2)))
    a("v_pk_add_f32 %s, %s, %s" % (vr(t2, 2), vr(vF + 4, 2), vr(vF + 6, 2)))
    a("v_pk_add_f32 %s, %s, %s" % (vr(t0, 2), vr(t0, 2), vr(vF + 8, 2)))
    a("v_pk_add_f32 %s, %s, %s" % (vr(t0, 2), vr(t0, 2), vr(t2, 2)))
    a("v_add_f32 v%d, v%d, v%d" % (t0, t0, t1))
    def wave_sum(v, sdst):
        for ctl in ("row_ror:8", "row_ror:4", "row_ror:2", "row_ror:1", "row_bcast:15 row_mask:0xa", "row_bcast:31 row_mask:0xc"):
            a("s_nop 1")
            rm = "" if "row_mask" in ctl else " row_mask:0xf"
            a("v_add_f32_dpp v%d, v%d, v%d %s%s bank_mask:0xf" % (v, v, v, ctl, rm))
        a("s_nop 0")
        a("v_readlane_b32 s%d, v%d, 63" % (sdst, v))
    wave_sum(t0, sT1)
    a("v_mov_b32 v%d, %s" % (t1, f32(1.0 / 640)))
    a("s_nop 0")
    a("v_mul_f32 v%d, s%d, v%d" % (t0, sT1, t1))
    vMEAN = vT + 4
    a("v_cvt_pk_bf16_f32 v%d, v%d, v%d" % (vMEAN, t0, t0))
    a("v_and_b32 v%d, 0xffff0000, v%d" % (vMEAN, vMEAN))
    for k in range(10):
        a("v_sub_f32 v%d, v%d, v%d" % (t2 + (k & 1), vF + k, t0))
        if k < 2:
            a("v_mul_f32 v%d, v%d, v%d" % (vT + 6 + (k & 1), t2 + (k & 1), t2 + (k & 1)))
        else:
            a("v_fmac_f32 v%d, v%d, v%d" % (vT + 6 + (k & 1), t2 + (k & 1), t2 + (k & 1)))
    a("v_add_f32 v%d, v%d, v%d" % (t0, vT + 6, vT + 7))
    wave_sum(t0, sT1)
    for k in range(10):
        a("v_sub_f32 v%d, v%d, v%d" % (vF + k, vF + k, vMEAN))
    a("v_mul_f32 v%d, s%d, v%d" % (t0, sT1, t1))
    a("v_cvt_pk_bf16_f32 v%d, v%d, v%d" % (t0, t0, t0))
    a("v_and_b32 v%d, 0xffff0000, v%d" % (t0, t0))
    a("v_add_f32 v%d, %s, v%d" % (t0, f32(1e-5), t0))
    a("v_cvt_pk_bf16_f32 v%d, v%d, v%d" % (t0, t0, t0))
    a("v_and_b32 v%d, 0xffff0000, v%d" % (t0, t0))
    a("v_sqrt_f32 v%d, v%d" % (t0, t0))
    for k in range(5):
        a("v_cvt_pk_bf16_f32 v%d, v%d, v%d" % (vXS + k, vF + 2 * k, vF + 2 * k + 1))
    a("v_cvt_pk_bf16_f32 v%d, v%d, v%d" % (t0, t0, t0))
    a("v_and_b32 v%d, 0xffff0000, v%d" % (t0, t0))
    a("v_rcp_f32 v%d, v%d" % (t0, t0))
    for k in range(5):
        a("v_lshlrev_b32 v%d, 16, v%d" % (vF + 2 * k, vXS + k))
        a("v_and_b32 v%d, 0xffff0000, v%d" % (vF + 2 * k + 1, vXS + k))
    for k in range(10):
        a("v_mul_f32 v%d, v%d, v%d" % (vF + k, vF + k, t0))
    for k in range(10):
        a("v_cvt_pk_bf16_f32 v%d, v%d, v%d" % (vF + k, vF + k, vF + k))
    a("v_mul_u32_u24 v%d, 52, v%d" % (t0, vLANE))
    a("v_lshrrev_b32 v%d, 8, v%d" % (t0, t0))
    a("v_mul_u32_u24 v%d, 160, v%d" % (t0, t0))
    a("v_lshl_add_u32 v%d, v%d, 5, v%d" % (t0, vLANE, t0))
    a("v_add_u32 v%d, 256, v%d" % (t1, vLANE))
    a("v_mul_u32_u24 v%d, 205, v%d" % (t2, t1))
    a("v_lshrrev_b32 v%d, 12, v%d" % (t2, t2))
    a("v_mul_u32_u24 v%d, 160, v%d" % (t2, t2))
    a("v_lshl_add_u32 v%d, v%d, 3, v%d" % (t1, t1, t2))
    for dup in (0, 160):
        a("ds_write_b128 v%d, %s offset:%d" % (t0, vr(vF), dup))
        a("ds_write_b128 v%d, %s offset:%d" % (t0, vr(vF + 4), dup + 16))
        a("ds_write_b64 v%d, %s offset:%d" % (t1, vr(vF + 8, 2), dup))
    stamp(3)
    a("s_cmp_eq_u32 s%d, 0" % sF)
    a("s_cbranch_scc1 L_LNDONE")
    a("s_waitcnt lgkmcnt(0)")
    a("s_barrier")
    a("s_branch L_WQ")
    a("L_LNDONE:")
    a("s_and_b32 s%d, s2, 15" % sT0)
    stamp(4)
    a("s_setprio 0")
    a("s_mul_i32 s%d, s%d, 320" % (sT0, sT0))
    a("s_lshl_b32 s%d, s%d, 4" % (sT1, sW))
    a("s_add_u32 s%d, s%d, s%d" % (sT0, sT0, sT1))
    a("v_lshl_add_u32 v%d, v%d, 2, s%d" % (vC, vG, sT0))
    a("s_sub_u32 s%d, s2, 160" % sT0)
    a("s_mul_i32 s%d, s%d, 205" % (sT1, sT0))
    a("s_lshr_b32 s%d, s%d, 10" % (sT1, sT1))
    a("s_mul_i32 s%d, s%d, 5" % (sT2, sT1))
    a("s_sub_u32 s%d, s%d, s%d" % (sT2, sT0, sT2))
    a("s_cmp_ge_u32 s2, 230")
    a("s_cselect_b32 s%d, 2, 1" % sROLE)
    a("s_cmp_lt_u32 s2, 160")
    a("s_cselect_b32 s%d, 0, s%d" % (sROLE, sROLE))
    a("s_cselect_b32 s%d, s%d, s%d" % (sRHO, sH, sT1))
    a("s_cselect_b32 s%d, s%d, s%d" % (sC, sSP, sT2))
    a("s_cselect_b32 s%d, 32, 64" % sT0)
    a("s_mov_b32 s%d, %d" % (W2 + 2, 1728 * 1280))
    a("s_cselect_b32 s%d, %d, s%d" % (W2 + 2, 4096 * 1280, W2 + 2))
    a("s_load_dwordx2 s[%d:%d], s[0:1], s%d" % (W2, W2 + 1, sT0))
    def masks():
        a("v_and_b32 v%d, 1, v%d" % (t3, vNN))
        a("v_lshlrev_b32 v%d, 4, v%d" % (t3, t3))
        a("v_mov_b32 v%d, 0xffff" % (vT + 4))
        a("v_lshlrev_b32 v%d, v%d, v%d" % (t3, t3, vT + 4))
        a("v_lshrrev_b32 v%d, 1, v%d" % (vT + 4, vNN))
        for r in range(4):
            a("v_cmp_eq_u32 s[%d:%d], %d, v%d" % (sM + 2 * r, sM + 2 * r + 1, r, vT + 4))
        a("v_lshlrev_b32 v%d, 3, v%d" % (vL8, vLANE))
        a("s_and_b32 s%d, s%d, 3" % (sT0, sW))
        a("s_lshl_b32 s%d, s%d, 9" % (sT0, sT0))
        a("v_lshl_add_u32 v%d, v%d, 4, s%d" % (vPW, vG, sT0))
        a("v_lshl_add_u32 v%d, v%d, 5, v%d" % (vPW, vNN, vPW))
        for r in range(4):
            a("v_cndmask_b32 v%d, 0, v%d, s[%d:%d]" % (vM + r, t3, sM + 2 * r, sM + 2 * r + 1))
    masks()
    a("s_waitcnt lgkmcnt(0)")
    for k in range(5):
        a("ds_read_b128 %s, v%d offset:%d" % (vr(vXN + 4 * k), vB, 16 * k))
    for j in range(3):
        a("ds_read_b32 v%d, v%d offset:%d" % (vXN1 + j, vC, 64 * j))
    a("v_and_b32 v%d, 1, v%d" % (t3, vG))
    a("v_lshlrev_b32 v%d, 3, v%d" % (t3, t3))
    a("v_lshrrev_b32 v%d, 1, v%d" % (t2, vG))
    a("v_add_u32 v%d, v%d, v%d" % (t3, t3, t2))
    a("v_mul_u32_u24 v%d, 1280, v%d" % (vD, t3))
    a("v_add_u32 v%d, v%d, v%d" % (vD, vD, vE))
    a("s_lshl_b32 s%d, s%d, 2" % (sT0, sRHO))
    a("s_add_u32 s%d, s%d, s%d" % (sT0, sT0, sW))
    a("s_mul_i32 s%d, s%d, %d" % (sW2o, sT0, 32 * 1280))
    a("s_lshl_b32 s%d, s%d, 8" % (sT0, sC))
    a("s_add_u32 s%d, s%d, s%d" % (sW2o, sW2o, sT0))
    a("s_cmp_eq_u32 s%d, 2" % sROLE)
    a("s_cselect_b32 s%d, 0x%x, s%d" % (sW2o, OOB, sW2o))
    def mfma_seq(seq, waits=None):
        def build(idx):
            A = vA0 if idx % 2 == 0 else vA1
            for r in range(4):
                a("v_and_b32 v%d, v%d, v%d" % (A + r, vM + r, seq[idx][0]))
        build(0)
        for idx in range(len(seq)):
            if idx + 1 < len(seq): build(idx + 1)
            else: a("s_nop 1")
            A = vA0 if idx % 2 == 0 else vA1
            _, B, acc, first = seq[idx]
            if waits and idx in waits: a(waits[idx])
            a("v_mfma_f32_16x16x32_bf16 %s, %s, %s, %s" % (vr(acc), vr(A), vr(B), "0" if first else vr(acc)))
    a("s_waitcnt vmcnt(24) lgkmcnt(0)")
    mfma_seq([(vXN + i, vWQ + 4 * i, vAQ, i == 0) for i in range(20)])
    for k in range(5):
        a("ds_read_b128 %s, v%d offset:%d" % (vr(vXN + 4 * k), vB, 80 + 16 * k))
    a("s_waitcnt vmcnt(0) lgkmcnt(0)")
    stamp(5)
    a("v_readfirstlane_b32 s%d, v%d" % (sTAG, vEP))
    mfma_seq([(vXN + i, vWQ + 80 + 4 * i, vAQ, False) for i in range(20)] + [(vXN1 + j, vW1 + 4 * j, vAH, j == 0) for j in range(3)])
    a("s_add_u32 s%d, s%d, 1" % (sTAG, sTAG))
    def reduce4(unit, dst):
        for k in range(2):
            a("ds_read2st64_b64 %s, v%d offset0:%d offset1:%d" % (vr(dst + 4 * k), vL8, unit + 2 * k, unit + 2 * k + 1))
        a("s_waitcnt lgkmcnt(1)")
        a("v_pk_add_f32 %s, %s, %s" % (vr(dst, 2), vr(dst, 2), vr(dst + 2, 2)))
        a("s_waitcnt lgkmcnt(0)")
        a("v_pk_add_f32 %s, %s, %s" % (vr(dst + 4, 2), vr(dst + 4, 2), vr(dst + 6, 2)))
        a("v_pk_add_f32 %s, %s, %s" % (vr(dst, 2), vr(dst, 2), vr(dst + 4, 2)))
    def publish(voff, soff, dualst=False):
        a("v_mov_b32 v%d, v%d" % (vR + 2, vR + 1))
        a("v_mov_b32 v%d, s%d" % (vR + 1, sTAG))
        a("v_mov_b32 v%d, s%d" % (vR + 3, sTAG))
        if dualst:
            a("s_add_u32 s%d, s%d, 0x%x" % (sT3, soff, WS_ALT))
            a("buffer_store_dwordx4 %s, v%d, %s, s%d offen" % (vr(vR), voff, srd(WS), sT3))
        a("buffer_store_dwordx4 %s, v%d, %s, s%d offen %s" % (vr(vR), voff, srd(WS), soff, st))
    a("s_cmp_eq_u32 s%d, 0" % sROLE)
    a("s_cbranch_scc1 L_C0")
    a("v_lshrrev_b32 v%d, 5, v%d" % (vT + 5, vLANE))
    a("s_cmp_eq_u32 s%d, 1" % sROLE)
    a("s_cbranch_scc0 L_C2")
    a("v_and_b32 v%d, 7, v%d" % (vT + 6, vLANE))
    a("v_lshl_add_u32 v%d, v%d, 1, v%d" % (vT + 5, vT + 6, vT + 5))
    a("s_lshl_b32 s%d, s%d, 7" % (sT0, sRHO))
    a("s_lshl_b32 s%d, s%d, 5" % (sT1, sW))
    a("s_add_u32 s%d, s%d, s%d" % (sT0, sT0, sT1))
    a("v_add_lshl_u32 v%d, v%d, s%d, 1" % (vT + 5, vT + 5, sT0))
    a("buffer_load_short_d16_hi v%d, v%d, %s, 0 offen" % (vCONST, vT + 5, srd(B1)))
    a("buffer_load_short_d16_hi v%d, v%d, %s, 0 offen offset:32" % (vEP, vT + 5, srd(B1)))
    a("s_branch L_C0")
    a("L_C2:")
    a("s_sub_u32 s%d, s2, 230" % sF)
    a("s_lshl_b32 s%d, s%d, 2" % (sF, sF))
    a("s_add_u32 s%d, s%d, s%d" % (sF, sF, sW))
    a("v_and_b32 v%d, 3, v%d" % (vT + 6, vLANE))
    a("v_lshl_add_u32 v%d, v%d, 1, v%d" % (vT + 5, vT + 6, vT + 5))
    a("s_lshl_b32 s%d, s%d, 3" % (sT0, sF))
    a("v_add_lshl_u32 v%d, v%d, s%d, 1" % (vT + 5, vT + 5, sT0))
    a("buffer_load_ushort v%d, v%d, %s, 0 offen" % (vPF + 1, vT + 5, srd(OUT)))
    a("s_mov_b32 exec_lo, 0x0000ffff")
    a("s_mov_b32 exec_hi, 0x0000ffff")
    a("buffer_load_short_d16_hi v%d, v%d, %s, 0 offen" % (vCONST, vT + 5, srd(X)))
    a("s_not_b64 exec, exec")
    a("buffer_load_short_d16_hi v%d, v%d, %s, 0 offen" % (vCONST, vT + 5, srd(B2)))
    a("s_mov_b64 exec, -1")
    a("L_C0:")
    a("s_mov_b32 exec_hi, 0")
    a("s_nop 4")
    a("ds_write_b128 v%d, %s offset:%d" % (vPW, vr(vAQ), U_QP * 512))
    a("ds_write_b128 v%d, %s offset:%d" % (vPW, vr(vAH), U_HP * 512))
    a("s_mov_b32 exec_hi, -1")
    vGA, vGB, vFA = vA, vB, vC
    a("v_lshrrev_b32 v%d, 3, v%d" % (vGB, vLANE))
    a("v_and_b32 v%d, 7, v%d" % (t3, vLANE))
    a("s_lshl_b32 s%d, s%d, 8" % (sT0, sW))
    a("v_lshl_add_u32 v%d, v%d, 4, s%d" % (vGA, t3, sT0))
    a("v_lshl_add_u32 v%d, v%d, 10, v%d" % (vGA, vGB, vGA))
    a("v_lshlrev_b32 v%d, 4, v%d" % (vGB, vGB))
    a("v_lshrrev_b32 v%d, 2, v%d" % (vFA, vLANE))
    a("v_mul_u32_u24 v%d, 3072, v%d" % (vFA, vFA))
    a("v_and_b32 v%d, 3, v%d" % (t3, vLANE))
    a("v_lshl_add_u32 v%d, v%d, 4, v%d" % (vFA, t3, vFA))
    a("s_mov_b32 s%d, 0x40000" % sSPIN)
    a("v_mov_b32 v%d, %d" % (t0, L_CNT))
    a("v_mov_b32 v%d, 1" % t1)
    a("s_waitcnt lgkmcnt(0)")
    a("s_mov_b64 exec, 1")
    a("ds_add_rtn_u32 v%d, v%d, v%d" % (t2, t0, t1))
    a("s_mov_b64 exec, -1")
    a("s_lshl_b32 s%d, s%d, 13" % (sM, sH))
    a("s_add_u32 s%d, s%d, 0x%x" % (sM, sM, WS_O + (WS_ALT if dual else 0)))
    a("s_lshl_b32 s%d, s%d, 7" % (sM + 1, sH))
    a("s_add_u32 s%d, s%d, 0x%x" % (sM + 1, sM + 1, WS_ML + (WS_ALT if dual else 0)))
    if warm and dual:
        a("s_cmp_lg_u32 s%d, 0" % sROLE)
        a("s_cbranch_scc1 L_NOWARM")
        a("buffer_load_dwordx4 %s, v%d, %s, s%d offen %s" % (vr(vP + 8), vGB, srd(WS), sM + 1, ld))
        a("buffer_load_dwordx4 %s, v%d, %s, s%d offen %s" % (vr(vP), vGA, srd(WS), sM, ld))
        a("buffer_load_dwordx4 %s, v%d, %s, s%d offen offset:128 %s" % (vr(vP + 4), vGA, srd(WS), sM, ld))
        a("L_NOWARM:")
    a("s_waitcnt lgkmcnt(0)")
    a("v_readfirstlane_b32 s%d, v%d" % (sT0, t2))
    a("s_nop 0")
    a("s_cmp_lg_u32 s%d, 3" % sT0)
    a("s_cbranch_scc1 L_NOH")
    reduce4(U_QP, vR)
    a("v_cvt_pk_bf16_f32 v%d, v%d, v%d" % (vR, vR, vR + 1))
    a("v_lshlrev_b32 v%d, 2, v%d" % (t0, vLANE))
    a("ds_write_b32 v%d, v%d offset:%d" % (t0, vR, L_QB))
    a("v_mov_b32 v%d, s%d" % (t1, sTAG))
    a("v_mov_b32 v%d, 0" % t0)
    a("ds_write_b32 v%d, v%d offset:%d" % (t0, t1, L_TAG))
    a("s_cmp_ge_u32 s2, 224")
    a("s_cbranch_scc1 L_NOH")
    reduce4(U_HP, vR)
    a("s_lshl_b32 s%d, s2, 10" % sT0)
    a("s_add_u32 s%d, s%d, 0x%x" % (sT0, sT0, WS_H))
    publish(vL16, sT0)
    a("L_NOH:")
    a("s_waitcnt lgkmcnt(0)")
    stamp(6)
    a("s_barrier")
    def HGATHER():
        a("buffer_load_dwordx4 %s, v%d, %s, s%d offen %s" % (vr(vP), vGA, srd(WS), sM, ld))
        a("buffer_load_dwordx4 %s, v%d, %s, s%d offen offset:128 %s" % (vr(vP + 4), vGA, srd(WS), sM, ld))
        a("buffer_load_dwordx4 %s, v%d, %s, s%d offen %s" % (vr(vP + 8), vGA, srd(WS), sM + 1, ld))
        a("buffer_load_dwordx4 %s, v%d, %s, s%d offen offset:128 %s" % (vr(vP + 12), vGA, srd(WS), sM + 1, ld))
    def w2_loads():
        for u in range(2):
            for i in range(4):
                if (u, i) in ((0, 2), (1, 2)): a("s_add_u32 s%d, s%d, 5120" % (sW2o, sW2o))
                if (u, i) == (1, 0): a("s_add_u32 s%d, s%d, %d" % (sW2o, sW2o, 20480 - 5120))
                a("buffer_load_dwordx4 %s, v%d, %s, s%d offen offset:%d %s" % (vr(vW2 + 16 * u + 4 * i), vD, srd(W2), sW2o, (i % 2) * 2560, nt))
    if w2early: w2_loads()
    a("s_barrier")
    if not w2early: w2_loads()
    a("s_cmp_lg_u32 s%d, 1" % sROLE)
    a("s_cbranch_scc1 L_NOEG")
    a("s_lshl_b32 s%d, s%d, 14" % (sM, sRHO))
    a("s_add_u32 s%d, s%d, 0x%x" % (sM, sM, WS_H))
    a("s_add_u32 s%d, s%d, 0x2000" % (sM + 1, sM))
    HGATHER()
    a("L_NOEG:")
    stamp(7)
    a("s_barrier")
    stamp(9)
    a("s_cmp_eq_u32 s%d, 2" % sROLE)
    a("s_cbranch_scc1 L_FIN")
    a("s_cmp_eq_u32 s%d, 1" % sROLE)
    a("s_cbranch_scc1 L_R1")
    vP0, vP1, vP2, vP3 = vP, vP + 4, vP + 8, vP + 12
    def tagcheck(bufs):
        tmps = []
        n = 0
        for b in bufs:
            for o in (1, 3):
                a("v_xor_b32 v%d, s%d, v%d" % (vT + n, sTAG, b + o)); tmps.append(vT + n); n += 1
        while len(tmps) > 1:
            if len(tmps) >= 3:
                a("v_or3_b32 v%d, v%d, v%d, v%d" % (tmps[0], tmps[0], tmps[1], tmps[2])); tmps = tmps[3:] + [tmps[0]]
            else:
                a("v_or_b32 v%d, v%d, v%d" % (tmps[0], tmps[0], tmps[1])); tmps = [tmps[0]]
        a("v_cmp_ne_u32 vcc, 0, v%d" % tmps[0])
    if stamps:
        a("s_cmp_lt_u32 s%d, 3" % sW)
        a("s_cbranch_scc1 L_POLL0")
        a("s_waitcnt vmcnt(0)")
        stamp(10)
    a("L_POLL0:")
    a("s_sub_u32 s%d, s%d, 1" % (sSPIN, sSPIN))
    a("s_cbranch_scc1 L_EXIT")
    if dual:
        a("s_cmp_eq_u32 s%d, 0x%x" % (sSPIN, 0x40000 - nA))
        a("s_cselect_b32 s%d, 0x%x, 0" % (sT0, WS_ALT))
        a("s_sub_u32 s%d, s%d, s%d" % (sM, sM, sT0))
        a("s_sub_u32 s%d, s%d, s%d" % (sM + 1, sM + 1, sT0))
    a("buffer_load_dwordx4 %s, v%d, %s, s%d offen %s" % (vr(vP2), vGB, srd(WS), sM + 1, ld))
    a("buffer_load_dwordx4 %s, v%d, %s, s%d offen %s" % (vr(vP0), vGA, srd(WS), sM, ld))
    a("buffer_load_dwordx4 %s, v%d, %s, s%d offen offset:128 %s" % (vr(vP1), vGA, srd(WS), sM, ld))
    a("s_waitcnt vmcnt(0)")
    tagcheck([vP0, vP1, vP2])
    a("s_cbranch_vccnz L_POLL0")
    stamp(11)
    def allred(v, tmp, op):
        a("s_nop 1")
        a("v_%s_f32_dpp v%d, v%d, v%d row_ror:8 row_mask:0xf bank_mask:0xf" % (op, v, v, v))
        for sw in ("16", "32"):
            a("v_mov_b32 v%d, v%d" % (tmp, v))
            a("s_nop 1")
            a("v_permlane%s_swap_b32 v%d, v%d" % (sw, v, tmp))
            a("v_%s_f32 v%d, v%d, v%d" % (op, v, v, tmp))
    a("v_mov_b32 v%d, v%d" % (t0, vP2))
    allred(t0, t1, "max")
    a("v_sub_f32 v%d, v%d, v%d" % (t0, vP2, t0))
    a("v_mul_f32 v%d, %s, v%d" % (t0, f32(LOG2E), t0))
    a("v_exp_f32 v%d, v%d" % (t0, t0))
    a("s_nop 0")
    a("v_mul_f32 v%d, v%d, v%d" % (t2, t0, vP2 + 2))
    for b in (vP0, vP1):
        a("v_mul_f32 v%d, v%d, v%d" % (b, b, t0))
        a("v_mul_f32 v%d, v%d, v%d" % (b + 2, b + 2, t0))
    def tred2(extra=None):
        if extra is not None:
            a("v_add_f32_dpp v%d, v%d, v%d row_ror:8 row_mask:0xf bank_mask:0xf" % (extra, extra, extra))
        else:
            a("s_nop 0")
        a("v_permlane32_swap_b32 v%d, v%d" % (vP0, vP0 + 2))
        a("v_permlane32_swap_b32 v%d, v%d" % (vP1, vP1 + 2))
        if extra is not None: a("v_mov_b32 v%d, v%d" % (t3, extra))
        a("v_add_f32 v%d, v%d, v%d" % (vP0, vP0, vP0 + 2))
        a("v_add_f32 v%d, v%d, v%d" % (vP1, vP1, vP1 + 2))
        if extra is not None: a("v_permlane32_swap_b32 v%d, v%d" % (extra, t3))
        a("v_mov_b32 v%d, v%d" % (vP0 + 2, vP0))
        a("v_mov_b32 v%d, v%d" % (vP1 + 2, vP1))
        if extra is not None:
            a("v_add_f32 v%d, v%d, v%d" % (extra, extra, t3))
            a("v_mov_b32 v%d, v%d" % (t3, extra))
        else:
            a("s_nop 0")
        a("v_permlane16_swap_b32 v%d, v%d" % (vP0, vP0 + 2))
        a("v_permlane16_swap_b32 v%d, v%d" % (vP1, vP1 + 2))
        if extra is not None: a("v_permlane16_swap_b32 v%d, v%d" % (extra, t3))
        a("v_add_f32 v%d, v%d, v%d" % (vP0, vP0, vP0 + 2))
        a("v_add_f32 v%d, v%d, v%d" % (vP1, vP1, vP1 + 2))
        if extra is not None:
            a("v_add_f32 v%d, v%d, v%d" % (extra, extra, t3))
            a("v_rcp_f32 v%d, v%d" % (extra, extra))
        else:
            a("s_nop 0")
        a("v_add_f32_dpp v%d, v%d, v%d row_ror:8 row_mask:0xf bank_mask:0xf" % (vP0, vP0, vP0))
        a("v_add_f32_dpp v%d, v%d, v%d row_ror:8 row_mask:0xf bank_mask:0xf" % (vP1, vP1, vP1))
    tred2(t2)
    a("v_mul_f32 v%d, v%d, v%d" % (vP0, vP0, t2))
    a("v_mul_f32 v%d, v%d, v%d" % (vP1, vP1, t2))
    a("s_branch L_GEMV2")
    a("L_POLL1:")
    a("s_sub_u32 s%d, s%d, 1" % (sSPIN, sSPIN))
    a("s_cbranch_scc1 L_EXIT")
    HGATHER()
    a("L_R1:")
    a("s_waitcnt vmcnt(0)")
    tagcheck([vP0, vP1, vP2, vP3])
    a("s_cbranch_vccnz L_POLL1")
    stamp(11)
    a("v_add_f32 v%d, v%d, v%d" % (vP0, vP0, vP2))
    a("v_add_f32 v%d, v%d, v%d" % (vP0 + 2, vP0 + 2, vP2 + 2))
    a("v_add_f32 v%d, v%d, v%d" % (vP1, vP1, vP3))
    a("v_add_f32 v%d, v%d, v%d" % (vP1 + 2, vP1 + 2, vP3 + 2))
    a("s_nop 0")
    tred2()
    k0 = -2.0 * 0.7978845608028654 * LOG2E
    for (b, cst, ta, tb) in ((vP0, vCONST, t0, t1), (vP1, vEP, t2, t3)):
        a("v_cvt_pk_bf16_f32 v%d, v%d, v%d" % (b, b, b))
        a("v_and_b32 v%d, 0xffff0000, v%d" % (b, b))
        a("v_and_b32 v%d, 0xffff0000, v%d" % (cst, cst))
        a("v_add_f32 v%d, v%d, v%d" % (b, b, cst))
        a("v_cvt_pk_bf16_f32 v%d, v%d, v%d" % (b, b, b))
        a("v_and_b32 v%d, 0xffff0000, v%d" % (b, b))
        a("v_mul_f32 v%d, v%d, v%d" % (ta, b, b))
        a("v_mov_b32 v%d, %s" % (tb, f32(k0)))
        a("v_fmac_f32 v%d, %s, v%d" % (tb, f32(k0 * 0.044715), ta))
        a("v_mul_f32 v%d, v%d, v%d" % (ta, tb, b))
        a("v_exp_f32 v%d, v%d" % (ta, ta))
        a("s_nop 0")
        a("v_add_f32 v%d, 1.0, v%d" % (ta, ta))
        a("v_rcp_f32 v%d, v%d" % (ta, ta))
        a("s_nop 0")
        a("v_mul_f32 v%d, v%d, v%d" % (b, b, ta))
    a("s_lshl_b32 s%d, s%d, 2" % (sT0, sRHO))
    a("s_add_u32 s%d, s%d, s%d" % (sT0, sT0, sW))
    a("s_cmp_lt_u32 s%d, 54" % sT0)
    a("s_cbranch_scc1 L_R1B")
    a("v_mov_b32 v%d, 0" % vP0)
    a("v_mov_b32 v%d, 0" % vP1)
    a("L_R1B:")
    a("s_add_u32 s%d, s%d, 32" % (sRHO, sRHO))
    a("L_GEMV2:")
    a("v_cvt_pk_bf16_f32 v%d, v%d, v%d" % (vP0, vP0, vP0))
    a("v_cvt_pk_bf16_f32 v%d, v%d, v%d" % (vP1, vP1, vP1))
    a("s_mul_i32 s%d, s%d, %d" % (sT0, sC, 16 * 3072))
    a("v_mov_b32_dpp v%d, v%d row_ror:4 row_mask:0xa bank_mask:0xf" % (vP0, vP0))
    a("v_mov_b32_dpp v%d, v%d row_ror:4 row_mask:0xa bank_mask:0xf" % (vP1, vP1))
    a("s_lshl_b32 s%d, s%d, 6" % (sT1, sRHO))
    for k in range(8):
        for r in range(4):
            a("v_and_b32_dpp v%d, v%d, v%d row_newbcast:%d row_mask:0xf bank_mask:0xf" % (vPA2 + 4 * k + r, vP0 if k < 4 else vP1, vM + r, k % 4))
        if k >= 1:
            a("v_mfma_f32_16x16x32_bf16 %s, %s, %s, %s" % (vr(vAQ), vr(vPA2 + 4 * (k - 1)), vr(vW2 + 4 * (k - 1)), "0" if k == 1 else vr(vAQ)))
    a("s_add_u32 s%d, s%d, s%d" % (sT0, sT0, sT1))
    a("s_add_u32 s%d, s%d, 0x%x" % (sT0, sT0, WS_F))
    a("v_mfma_f32_16x16x32_bf16 %s, %s, %s, %s" % (vr(vAQ), vr(vPA2 + 28), vr(vW2 + 28), vr(vAQ)))
    a("s_mov_b32 exec_hi, 0")
    a("s_nop 6")
    a("ds_write_b128 v%d, %s offset:%d" % (vPW, vr(vAQ), U_FP * 512))
    a("s_mov_b32 exec_hi, -1")
    a("s_waitcnt lgkmcnt(0)")
    a("s_barrier")
    stamp(12)
    a("s_cmp_lg_u32 s%d, 0" % sW)
    a("s_cbranch_scc1 L_EXIT")
    reduce4(U_FP, vR)
    publish(vFA, sT0)
    a("s_branch L_EXIT")
    a("L_FIN:")
    a("s_cmp_ge_u32 s%d, 80" % sF)
    a("s_cbranch_scc1 L_EXIT")
    a("s_mul_i32 s%d, s%d, 3072" % (sT0, sF))
    a("s_add_u32 s%d, s%d, 0x%x" % (sT0, sT0, WS_F))
    a("v_lshrrev_b32 v%d, 5, v%d" % (vT + 5, vLANE))
    a("v_and_b32 v%d, 3, v%d" % (vT + 6, vLANE))
    a("v_lshl_add_u32 v%d, v%d, 1, v%d" % (vT + 5, vT + 6, vT + 5))
    a("s_lshl_b32 s%d, s%d, 3" % (sT1, sF))
    a("v_add_lshl_u32 v%d, v%d, s%d, 1" % (vPF, vT + 5, sT1))
    a("v_mov_b32 v%d, 0" % vP2)
    a("v_mov_b32 v%d, s%d" % (vP2 + 1, sTAG))
    a("v_mov_b32 v%d, 0" % (vP2 + 2))
    a("v_mov_b32 v%d, s%d" % (vP2 + 3, sTAG))
    a("s_waitcnt vmcnt(0)")
    a("v_and_b32 v%d, 0xffff0000, v%d" % (vCONST, vCONST))
    a("L_POLL2:")
    a("s_sub_u32 s%d, s%d, 1" % (sSPIN, sSPIN))
    a("s_cbranch_scc1 L_EXIT")
    a("buffer_load_dwordx4 %s, v%d, %s, s%d offen %s" % (vr(vP0), vL16, srd(WS), sT0, ld))
    a("buffer_load_dwordx4 %s, v%d, %s, s%d offen offset:1024 %s" % (vr(vP1), vL16, srd(WS), sT0, ld))
    a("s_mov_b32 exec_hi, 0x00ffffff")
    a("buffer_load_dwordx4 %s, v%d, %s, s%d offen offset:2048 %s" % (vr(vP2), vL16, srd(WS), sT0, ld))
    a("s_mov_b32 exec_hi, -1")
    a("s_waitcnt vmcnt(0)")
    tagcheck([vP0, vP1, vP2])
    a("s_cbranch_vccnz L_POLL2")
    stamp(12)
    a("v_add_f32 v%d, v%d, v%d" % (vP0, vP0, vP1))
    a("v_add_f32 v%d, v%d, v%d" % (vP0 + 2, vP0 + 2, vP1 + 2))
    a("v_permlane32_swap_b32 v%d, v%d" % (vP2, vP2 + 2))
    a("v_add_f32 v%d, v%d, v%d" % (vP2, vP2, vP2 + 2))
    a("v_permlane32_swap_b32 v%d, v%d" % (vP0, vP0 + 2))
    a("v_add_f32 v%d, v%d, v%d" % (vP0, vP0, vP0 + 2))
    a("s_nop 1")
    a("v_permlane16_swap_b32 v%d, v%d" % (vP0, vP2))
    a("v_add_f32 v%d, v%d, v%d" % (vP0, vP0, vP2))
    a("s_nop 1")
    a("v_add_f32_dpp v%d, v%d, v%d row_ror:4 row_mask:0xf bank_mask:0xf" % (vP0, vP0, vP0))
    a("s_nop 1")
    a("v_add_f32_dpp v%d, v%d, v%d row_ror:8 row_mask:0xf bank_mask:0xf" % (vP0, vP0, vP0))
    a("v_cvt_pk_bf16_f32 v%d, v%d, v%d" % (vP0, vP0, vP0))
    a("v_and_b32 v%d, 0xffff0000, v%d" % (vP0, vP0))
    a("v_add_f32 v%d, v%d, v%d" % (vP0, vP0, vCONST))
    a("v_cvt_pk_bf16_f32 v%d, v%d, v%d" % (vP0, vP0, vP0))
    a("v_and_b32 v%d, 0xffff0000, v%d" % (vP0, vP0))
    a("v_mov_b32 v%d, v%d" % (t1, vP0))
    a("s_nop 1")
    a("v_permlane16_swap_b32 v%d, v%d" % (vP0, t1))
    a("v_add_f32 v%d, v%d, v%d" % (vP0, vP0, t1))
    a("v_cvt_pk_bf16_f32 v%d, v%d, v%d" % (vP0, vP0, vP0))
    a("s_mov_b32 exec_lo, 0xf")
    a("s_mov_b32 exec_hi, 0xf")
    a("buffer_store_short v%d, v%d, %s, 0 offen" % (vP0, vPF, srd(OUT)))
    a("s_cmp_lg_u32 s%d, 0" % sF)
    a("s_cbranch_scc1 L_EXIT")
    a("s_mov_b64 exec, 1")
    a("v_mov_b32 v%d, 0" % t0)
    a("v_mov_b32 v%d, s%d" % (t1, sTAG))
    a("buffer_store_dword v%d, v%d, %s, 0 offen offset:%d sc1" % (t1, t0, srd(WS), WS_EPOCH))
    a("s_branch L_EXIT")
    a("L_KV:")
    stamp(10)
    if prefetch:
        a("s_cmp_lt_u32 s2, 232")
        a("s_cbranch_scc1 L_NOPF")
        a("s_cmp_lg_u32 s%d, 4" % sW)
        a("s_cbranch_scc1 L_NOPF")
        a("s_getpc_b64 s[%d:%d]" % (sM, sM + 1))
        a("L_PC:")
        a("s_sub_u32 s%d, s%d, L_PC-L_AUX0" % (sM, sM))
        a("s_subb_u32 s%d, s%d, 0" % (sM + 1, sM + 1))
        for i in range(codekb):
            if i and i % 4 == 0:
                a("s_add_u32 s%d, s%d, 4096" % (sM, sM)); a("s_addc_u32 s%d, s%d, 0" % (sM + 1, sM + 1))
            a("global_load_dwordx4 %s, v%d, s[%d:%d] offset:%d" % (vr(vPF), vL16, sM, sM + 1, (i % 4) * 1024))
        a("L_NOPF:")
    a("s_setprio 1")
    a("s_mov_b32 s%d, 0x%x" % (K + 2, 64 << 20))
    a("s_mov_b32 s%d, 0x%x" % (V + 2, 64 << 20))
    a("s_mov_b32 s%d, 0x%x" % (WS + 2, 256 << 20))
    a("s_lshl_b32 s%d, s%d, 21" % (sKV, sH))
    a("s_lshl_b32 s%d, s%d, 16" % (sT0, sSP))
    a("s_add_u32 s%d, s%d, s%d" % (sKV, sKV, sT0))
    a("s_lshl_b32 s%d, s%d, 14" % (sT0, sW))
    a("s_add_u32 s%d, s%d, s%d" % (sKV, sKV, sT0))
    a("s_add_u32 s%d, s%d, 0x%x" % (sKV, sKV, 0x180000 - 4 * 16384))
    for j in range(1, 4):
        a("s_add_u32 s%d, s%d, 0x%x" % (sKV + j, sKV, 4096 * j))
    a("v_lshrrev_b32 v%d, 2, v%d" % (t3, vNN))
    a("v_lshlrev_b32 v%d, 8, v%d" % (vA, t3))
    a("v_lshl_add_u32 v%d, v%d, 6, v%d" % (vA, vG, vA))
    a("v_and_b32 v%d, 3, v%d" % (t3, vNN))
    a("v_lshl_add_u32 v%d, v%d, 4, v%d" % (vA, t3, vA))
    a("v_lshl_add_u32 v%d, v%d, 10, v%d" % (vB, vG, vE))
    a("v_lshlrev_b32 v%d, 4, v%d" % (vC, t3))
    a("v_lshl_add_u32 v%d, v%d, 6, v%d" % (vC, vG, vC))
    a("s_waitcnt lgkmcnt(0)")
    stamp(3)
    def kvload(n):
        if n < 16:
            L = n
            a("buffer_load_dwordx4 %s, v%d, %s, s%d offen offset:%d %s" % (vr(vK + 4 * L), vA, srd(K), sKV + L // 4, (L % 4) * 1024, nt))
        else:
            L = n - 16
            a("buffer_load_dwordx4 %s, v%d, %s, s%d offen offset:%d %s" % (vr(vV + 4 * L), vB, srd(V), sKV + L // 4, (L % 4) * 256, nt))
    a("s_bitcmp1_b32 s%d, %d" % (sSP, tbit))
    if not stag: a("s_cmp_eq_u32 s2, 9999")
    a("s_cbranch_scc1 L_KB")
    a("s_barrier")
    a("s_barrier")
    a("L_KB:")
    for n in range(kfirst):
        kvload(n)
        if n == 3: stamp(11)
    stamp(12)
    a("s_cbranch_scc0 L_KC")
    a("s_barrier")
    a("s_barrier")
    a("L_KC:")
    for n in range(kfirst, 32):
        if n == 16:
            stamp(1)
            a("s_setprio 0")
        kvload(n)
    stamp(4)
    a("s_setprio 1")
    masks()
    stamp(2)
    for r in range(16):
        a("v_mov_b32 v%d, 0" % (vAT + r))
    stamp(5)
    a("s_barrier")
    stamp(6)
    for t in range(4):
        a("s_mov_b32 exec_lo, 0x%08x" % (0x000f000f << (4 * t)))
        a("s_mov_b32 exec_hi, 0x%08x" % (0x000f000f << (4 * t)))
        a("ds_read_b128 %s, v%d offset:%d" % (vr(vAT + 4 * t), vC, L_QB))
    a("s_mov_b64 exec, -1")
    a("v_mov_b32 v%d, 0" % vD)
    a("ds_read_b32 v%d, v%d offset:%d" % (vEP, vD, L_TAG))
    a("s_waitcnt vmcnt(16) lgkmcnt(1)")
    for L in range(16):
        acc = vS + 4 * (L // 4)
        a("v_mfma_f32_16x16x32_bf16 %s, %s, %s, %s" % (vr(acc), vr(vAT + 4 * (L % 4)), vr(vK + 4 * L), "0" if L % 4 == 0 else vr(acc)))
    sc = [vT + 8, vT + 9, vT + 10, vT + 11]
    for k in range(4):
        for j in range(4):
            if k == 0:
                if j == 2: a("s_nop 1")
                if j == 3: a("s_nop 2")
                a("v_mov_b32_dpp v%d, v%d quad_perm:[0,0,0,0] row_mask:0xf bank_mask:0xf" % (sc[j], vS + 4 * j))
            else:
                a("v_add_f32_dpp v%d, v%d, v%d quad_perm:[%d,%d,%d,%d] row_mask:0xf bank_mask:0xf" % (sc[j], vS + 4 * j + k, sc[j], k, k, k, k))
    for rnd in range(2):
        a("v_cvt_pk_bf16_f32 v%d, v%d, v%d" % (t0, sc[0], sc[1]))
        a("v_cvt_pk_bf16_f32 v%d, v%d, v%d" % (t1, sc[2], sc[3]))
        a("v_lshlrev_b32 v%d, 16, v%d" % (sc[0], t0))
        a("v_and_b32 v%d, 0xffff0000, v%d" % (sc[1], t0))
        a("v_lshlrev_b32 v%d, 16, v%d" % (sc[2], t1))
        a("v_and_b32 v%d, 0xffff0000, v%d" % (sc[3], t1))
        if rnd == 0:
            for j in range(4):
                a("v_mul_f32 v%d, %s, v%d" % (sc[j], f32(128 ** -0.5), sc[j]))
    a("v_max_f32 v%d, v%d, v%d" % (t2, sc[0], sc[1]))
    a("v_max3_f32 v%d, v%d, v%d, v%d" % (t2, sc[2], sc[3], t2))
    a("v_mov_b32 v%d, %d" % (t3, L_MX))
    a("s_mov_b32 exec_lo, 0x11111111")
    a("s_mov_b32 exec_hi, 0x11111111")
    a("ds_max_f32 v%d, v%d" % (t3, t2))
    a("s_mov_b64 exec, -1")
    a("s_waitcnt lgkmcnt(0)")
    a("s_barrier")
    vMX = vT + 4
    a("ds_read_b32 v%d, v%d" % (vMX, t3))
    stamp(7)
    a("s_waitcnt lgkmcnt(0)")
    for j in range(4): a("v_sub_f32 v%d, v%d, v%d" % (sc[j], sc[j], vMX))
    for j in range(4): a("v_mul_f32 v%d, %s, v%d" % (sc[j], f32(LOG2E), sc[j]))
    for j in range(4): a("v_exp_f32 v%d, v%d" % (sc[j], sc[j]))
    a("v_add_f32 v%d, v%d, v%d" % (t2, sc[0], sc[1]))
    a("v_add_f32 v%d, v%d, v%d" % (t1, sc[2], sc[3]))
    for j in range(4): a("v_cvt_pk_bf16_f32 v%d, v%d, v%d" % (sc[j], sc[j], sc[j]))
    a("v_add_f32 v%d, v%d, v%d" % (t2, t2, t1))
    pa = [(aa, i, r) for aa in range(4) for i in range(4) for r in range(4)]
    def pab(n):
        for _ in range(n):
            aa, i, r = pa.pop(0)
            a("v_and_b32_dpp v%d, v%d, v%d row_newbcast:%d row_mask:0xf bank_mask:0xf" % (vK + 16 * aa + 4 * i + r, sc[aa], vM + r, 4 * i))
    pab(2)
    for ctl in ("row_ror:4 row_mask:0xf", "row_ror:8 row_mask:0xf", "row_bcast:15 row_mask:0xa", "row_bcast:31 row_mask:0xc"):
        a("v_add_f32_dpp v%d, v%d, v%d %s bank_mask:0xf" % (t2, t2, t2, ctl))
        pab(2)
    a("s_lshl_b32 s%d, s%d, 2" % (sT0, sW))
    a("v_mov_b32 v%d, s%d" % (t3, sT0))
    a("s_mov_b32 exec_lo, 0")
    a("s_mov_b32 exec_hi, 0x80000000")
    a("ds_write_b32 v%d, v%d offset:%d" % (t3, t2, L_LS - 16))
    a("s_mov_b64 exec, -1")
    pab(len(pa))
    vRk = 36
    a("v_mov_b32 v%d, v%d" % (vRk + 9, vEP))
    a("v_mov_b32 v%d, v%d" % (vRk + 11, vEP))
    a("s_lshl_b32 s%d, s%d, 3" % (sT1, sH))
    a("s_add_u32 s%d, s%d, s%d" % (sT1, sT1, sSP))
    a("s_lshl_b32 s%d, s%d, 10" % (sT0, sT1))
    a("s_add_u32 s%d, s%d, 0x%x" % (sT0, sT0, WS_O))
    a("s_lshl_b32 s%d, s%d, 4" % (sT1, sT1))
    a("s_add_u32 s%d, s%d, 0x%x" % (sT1, sT1, WS_ML))
    a("s_cmp_eq_u32 s%d, 5" % sW)
    a("s_cselect_b32 s%d, s%d, s%d" % (sT0, sT1, sT0))
    a("s_add_u32 s%d, s%d, 0x%x" % (sT1, sT0, WS_ALT))
    stamp(8)
    for k in range(16):
        a("s_waitcnt vmcnt(%d)" % (15 - k))
        a("v_mfma_f32_16x16x32_bf16 %s, %s, %s, %s" % (vr(vO), vr(vK + 4 * k), vr(vV + 4 * k), "0" if k == 0 else vr(vO)))
    a("s_mov_b32 exec_hi, 0")
    a("s_nop 6")
    a("ds_write_b128 v%d, %s offset:%d" % (vPW, vr(vO), U_OP * 512))
    a("s_mov_b32 exec_hi, -1")
    a("s_waitcnt lgkmcnt(0)")
    a("s_barrier")
    stamp(9)
    a("s_cmp_gt_u32 s%d, 5" % sW)
    a("s_cbranch_scc1 L_EXIT")
    a("s_cmp_eq_u32 s%d, 5" % sW)
    a("s_cbranch_scc1 L_ML")
    for k in range(2):
        a("ds_read2st64_b64 %s, v%d offset0:%d offset1:%d" % (vr(vRk + 4 * k), vL8, U_OP + 2 * k, U_OP + 2 * k + 1))
    a("s_waitcnt lgkmcnt(1)")
    a("v_pk_add_f32 %s, %s, %s" % (vr(vRk, 2), vr(vRk, 2), vr(vRk + 2, 2)))
    a("s_waitcnt lgkmcnt(0)")
    a("v_pk_add_f32 %s, %s, %s" % (vr(vRk + 4, 2), vr(vRk + 4, 2), vr(vRk + 6, 2)))
    a("v_add_f32 v%d, v%d, v%d" % (vRk + 8, vRk, vRk + 4))
    a("v_add_f32 v%d, v%d, v%d" % (vRk + 10, vRk + 1, vRk + 5))
    def pub2(voff):
        if dual: a("buffer_store_dwordx4 %s, v%d, %s, s%d offen" % (vr(vRk + 8), voff, srd(WS), sT1))
        a("buffer_store_dwordx4 %s, v%d, %s, s%d offen %s" % (vr(vRk + 8), voff, srd(WS), sT0, st))
    pub2(vL16)
    a("s_branch L_EXIT")
    a("L_ML:")
    a("ds_read_b128 %s, v%d offset:%d" % (vr(vRk), vD, L_LS))
    a("v_mov_b32 v%d, v%d" % (vRk + 8, vMX))
    a("s_mov_b64 exec, 1")
    a("s_waitcnt lgkmcnt(0)")
    a("v_pk_add_f32 %s, %s, %s" % (vr(vRk, 2), vr(vRk, 2), vr(vRk + 2, 2)))
    a("v_add_f32 v%d, v%d, v%d" % (vRk + 10, vRk, vRk + 1))
    pub2(vD)
    a("L_EXIT:")
    if stamps:
        a("s_waitcnt vmcnt(0)")
        stamp(13)
        a("s_waitcnt lgkmcnt(0)")
        a("s_lshl_b32 s%d, s2, 3" % sT0)
        a("s_add_u32 s%d, s%d, s%d" % (sT0, sT0, sW))
        a("s_lshl_b32 s%d, s%d, 7" % (sT0, sT0))
        a("s_add_u32 s%d, s%d, 0x%x" % (sT0, sT0, WS_ST))
        a("s_mov_b64 exec, 1")
        a("v_mov_b32 v1, 0")
        for i in range(16):
            if i < NST:
                a("v_mov_b32 v2, s%d" % (72 + 2 * i)); a("v_mov_b32 v3, s%d" % (73 + 2 * i))
            else:
                a("v_mov_b32 v2, 0"); a("v_mov_b32 v3, 0")
            a("buffer_store_dwordx2 v[2:3], v1, %s, s%d offen offset:%d" % (srd(WS), sT0, i * 8))
            a("s_nop 1")
    a("L_END:")
    a("s_endpgm")
    body = a.text()
    errs = hazard.check(body)
    if errs:
        print("\n".join(errs)); raise SystemExit("hazards")
    return wrap(body, 256, 512, LDS_BYTES, NV, sgpr=102)

if __name__ == "__main__":
    open("k6.s", "w").write(gen(codekb=8, qnt="", w2early=True, warm=False))
    open("k6s.s", "w").write(gen(stamps=True, qnt="", codekb=8, w2early=True, warm=False))
    open("k6s_late.s", "w").write(gen(stamps=True, qnt="", codekb=8, w2early=False, warm=False))
    open("k6s_warm.s", "w").write(gen(stamps=True, qnt="", codekb=8, w2early=True, warm=True))
    open("k6s_nont.s", "w").write(gen(stamps=True, qnt="", nt="", codekb=8, w2early=True, warm=False))
    open("k6_nont.s", "w").write(gen(qnt="", nt="", codekb=8, w2early=True, warm=False))
    open("k6_allnt.s", "w").write(gen(codekb=8, w2early=True, warm=False))
```

```python
import re, sys

def regs(tok):
    tok = tok.strip().lstrip('-').strip('|')
    m = re.fullmatch(r'([vs])(\d+)', tok)
    if m: return {(m.group(1), int(m.group(2)))}
    m = re.fullmatch(r'([vs])\[(\d+):(\d+)\]', tok)
    if m: return {(m.group(1), i) for i in range(int(m.group(2)), int(m.group(3)) + 1)}
    if tok == 'vcc': return {('s', 'vcc')}
    if tok in ('exec', 'exec_lo', 'exec_hi'): return {('s', 'exec')}
    return set()

TRANS = ('v_exp_f32', 'v_log_f32', 'v_rcp_f32', 'v_rsq_f32', 'v_sqrt_f32', 'v_sin_f32', 'v_cos_f32')

def parse(line):
    line = line.split(';')[0].strip()
    if not line or line.endswith(':') or line.startswith('.'): return None
    parts = line.split(None, 1)
    op = parts[0]
    rest = parts[1] if len(parts) > 1 else ''
    ops = [o.strip() for o in re.split(r',\s*(?![^\[]*\])', rest)]
    mods = ''
    if ops:
        sp = ops[-1].split(None, 1)
        if len(sp) > 1:
            ops[-1] = sp[0]; mods = sp[1]
    d = dict(op=op, ops=ops, mods=mods, line=line)
    isv = op.startswith('v_')
    d['valu'] = isv and not op.startswith('v_mfma')
    d['mfma'] = op.startswith('v_mfma')
    d['dpp'] = '_dpp' in op
    d['perm'] = op.startswith('v_permlane')
    d['trans'] = any(op.startswith(t) for t in TRANS)
    d['vmem'] = op.startswith(('buffer_', 'global_'))
    d['ds'] = op.startswith('ds_')
    w, r = set(), set()
    if isv:
        if op.startswith('v_cmp'):
            w |= regs(ops[0]); [r.update(regs(o)) for o in ops[1:]]
        elif d['perm']:
            w |= regs(ops[0]) | regs(ops[1]); r |= regs(ops[0]) | regs(ops[1])
        else:
            w |= regs(ops[0]); [r.update(regs(o)) for o in ops[1:]]
            if op.startswith(('v_fmac', 'v_dot2c')) or d['dpp']: r |= regs(ops[0])
            if op.startswith('v_cndmask') and len(ops) == 3: r.add(('s', 'vcc'))
    elif d['vmem']:
        if 'load' in op and 'lds' not in mods:
            w |= regs(ops[0]); [r.update(regs(o)) for o in ops[1:]]
        else:
            [r.update(regs(o)) for o in ops]
    elif d['ds']:
        if op.startswith(('ds_read', 'ds_bperm', 'ds_swizzle', 'ds_perm')):
            w |= regs(ops[0]); [r.update(regs(o)) for o in ops[1:]]
        else:
            [r.update(regs(o)) for o in ops]
    elif op.startswith('s_'):
        if not op.startswith(('s_cmp', 's_cbranch', 's_branch', 's_waitcnt', 's_nop', 's_barrier', 's_endpgm', 's_setprio', 's_sleep')):
            w |= regs(ops[0]); [r.update(regs(o)) for o in ops[1:]]
        else:
            [r.update(regs(o)) for o in ops]
    d['w'], d['r'] = w, r
    d['states'] = (int(ops[0], 0) + 1) if op == 's_nop' else 1
    return d

def check(text):
    ins = []
    labels = {}
    for ln, line in enumerate(text.split('\n'), 1):
        t = line.split(';')[0].strip()
        if t.endswith(':'): labels[t[:-1]] = len(ins)
        d = parse(line)
        if d: d['ln'] = ln; ins.append(d)
    errs = []
    seg = []
    for d in ins:
        seg.append(d)
        if d['op'] in ('s_branch', 's_endpgm'):
            errs += check_seq(seg); seg = []
    errs += check_seq(seg)
    for i, d in enumerate(ins):
        if d['op'].startswith(('s_branch', 's_cbranch')) and d['ops'][0] in labels:
            pre = []
            for j in range(i, max(-1, i - 24), -1):
                if j < i and ins[j]['op'] in ('s_branch', 's_endpgm'): break
                pre.insert(0, ins[j])
            post = []
            for j in range(labels[d['ops'][0]], min(len(ins), labels[d['ops'][0]] + 24)):
                post.append(ins[j])
                if ins[j]['op'] in ('s_branch', 's_endpgm'): break
            errs += check_seq(pre + post)
    return sorted(set(errs))

def check_seq(ins):
    errs = []
    for i, c in enumerate(ins):
        dist = 0
        for j in range(i - 1, max(-1, i - 24), -1):
            p = ins[j]
            def need(n, why):
                if dist < n: errs.append("line %d: '%s' needs %d states after line %d '%s' (has %d): %s" % (c['ln'], c['line'], n, p['ln'], p['line'], dist, why))
            vw = {x for x in p['w'] if x[0] == 'v'}
            sw = {x for x in p['w'] if x[0] == 's'}
            if p['valu']:
                if c['dpp'] and vw & c['r']: need(2, 'VALU->DPP')
                if c['perm'] and vw & c['r']: need(2, 'VALU->permlane')
                if c['mfma'] and vw & c['r']: need(2, 'VALU->MFMA')
                if c['op'].startswith(('v_readlane', 'v_readfirstlane')) and vw & c['r']: need(1, 'VALU->readlane')
                if p['trans'] and c['valu'] and not c['trans'] and vw & c['r']: need(1, 'trans->VALU')
                if p['trans'] and c['mfma'] and vw & c['r']: need(2, 'trans->mfma')
                if sw and (c['valu'] or c['mfma']) and sw & c['r']: need(2, 'VALU sgpr->VALU const')
                if sw and c['vmem'] and sw & c['r']: need(5, 'VALU sgpr->VMEM')
                if sw and c['op'].startswith('s_') and sw & c['r'] and not c['op'].startswith('s_cbranch'): need(1, 'VALU sgpr->SALU (pad)')
            if p['mfma']:
                D = p['w']
                npass = 4 if '16x16x32' in p['op'] else 8
                big = {4: 8, 8: 12}[npass]
                if (c['valu'] or c['vmem'] or c['ds']) and D & (c['r'] | c['w']): need(big, 'MFMA D->VALU/mem')
                if c['mfma']:
                    a = regs(c['ops'][1]) | regs(c['ops'][2]); cc = regs(c['ops'][3])
                    if D & a: need(big, 'MFMA D->MFMA A/B')
                    if D & cc and cc != D: need(big - 2, 'MFMA D->C overlap')
                    if D & c['w'] and not (D & cc): need(big, 'MFMA WAW?')
                srcC = regs(p['ops'][3])
                if c['valu'] and srcC & c['w']: need({4: 3, 8: 7}[npass], 'MFMA C WAR')
            if p['vmem'] and 'store' in p['op'] and ('x4' in p['op'] or 'x3' in p['op']):
                if c['valu'] and regs(p['ops'][0]) & c['w']: need(2, 'store data WAR')
            dist += p['states']
            if dist >= 20: break
    return errs

if __name__ == '__main__':
    e = check(open(sys.argv[1]).read())
    print("\n".join(e) if e else "hazard check clean")
```

```python
import sys, struct
from glib import *
import hazard

def f32(x):
    return "0x%08x" % struct.unpack("<I", struct.pack("<f", x))[0]

WS_EPOCH = 0
WS_ML = 0x8000
WS_O = 0x10000
WS_Q = 0x50000
WS_H = 0x90000
WS_F = 0xD0000
WS_ALT = 0x110000
WS_ST = 0x8000000
U_XN, U_QP, U_HP, U_Q2, U_OP, U_FP, U_MISC = 0, 5, 9, 13, 17, 21, 25
L_QB = U_MISC * 512
L_MX = L_QB + 256
L_CNT1 = L_QB + 260
L_CNT2 = L_QB + 264
L_CNT3 = L_QB + 268
L_LS = L_QB + 272
L_TAG = L_QB + 288
L_CNT4 = L_QB + 292
LDS_BYTES = L_QB + 512
OOB = 0x7ff00000
NST = 14
LOG2E = 1.4426950408889634
SPIN = 0x40000

def gen(stamps=False, codekb=7, nt="nt", qnt="nt", st="sc1", ld="sc1", w2at=2, nA=32, nAq=12, dry=True, outfl="",
        amap=2, hrot=0, waitpub=True, pipeq=False, b0late=False, khold=4):
    a = Asm()
    def stamp(k):
        if stamps: a("s_memrealtime s[%d:%d]" % (72 + 2 * k, 73 + 2 * k))
    X, K, V, WQ, W2, W1, B1, B2, OUT, WS = 4, 8, 12, 16, 20, 24, 28, 32, 36, 40
    sH, sSP, sW, sROLE, sTAG, sT3, sT0, sT1, sT2, sRHO, sC, sSPIN, sQ, sW1o, sW2o, sF = range(44, 60)
    sM = 60
    sKV = 68
    sDRY = 3
    sGO, sGM, sFO, sGQ = 60, 61, 62, 63
    def srd(n): return "s[%d:%d]" % (n, n + 3)
    def vr(n, c=4): return "v[%d:%d]" % (n, n + c - 1)
    vLANE, vG, vNN = 1, 2, 3
    vT = 4
    t0, t1, t2, t3 = vT, vT + 1, vT + 2, vT + 3
    vM = 16
    vA, vB, vC, vD, vPW, vL8, vL16, vE, vCONST, vEP = range(20, 30)
    vXS = 30
    vW1o = 35
    vR = 36
    vXN = 52
    vA0, vA1 = 60, 64
    vAQ, vAH = 68, 72
    vWQ = 76
    vW1 = 96
    vW2 = 108
    vPA2 = 140
    vP0, vP1, vP2, vP3 = 172, 176, 180, 184
    vFAC = 188
    vQ0, vQ1, vQ2, vQ3 = 192, 196, 200, 204
    vPF = 208
    vK, vV, vAT, vS, vO = 80, 144, 36, 60, 76
    NV = 212
    DPP = "row_mask:0xf bank_mask:0xf"

    a("s_cmp_ge_u32 s2, 256")
    a("s_cbranch_scc1 L_END")
    if stamps:
        for k in range(NST): a("s_mov_b64 s[%d:%d], 0" % (72 + 2 * k, 73 + 2 * k))
    stamp(0)
    for (r, off) in ((X, 0), (WQ, 24), (K, 8), (V, 16), (W1, 48), (WS, 96)):
        a("s_load_dwordx2 s[%d:%d], s[0:1], %d" % (r, r + 1, off))
    a("v_lshrrev_b32 v%d, 6, v0" % vT)
    a("v_and_b32 v%d, 63, v0" % vLANE)
    a("v_readfirstlane_b32 s%d, v%d" % (sW, vT))
    a("s_and_b32 s%d, s2, 31" % sH)
    a("s_lshr_b32 s%d, s2, 5" % sSP)
    a("v_lshlrev_b32 v%d, 4, v%d" % (vL16, vLANE))
    a("v_lshrrev_b32 v%d, 4, v%d" % (vG, vLANE))
    a("v_and_b32 v%d, 15, v%d" % (vNN, vLANE))
    a("v_lshlrev_b32 v%d, 4, v%d" % (vE, vNN))
    a("s_mov_b32 s%d, 0x%x" % (WS + 2, 256 << 20))
    a("s_mov_b32 s%d, 0x20000" % (WS + 3))
    a("s_cmp_ge_u32 s%d, 4" % sW)
    a("s_cbranch_scc1 L_KV")
    a("s_setprio 3")
    a("s_mov_b32 s%d, 0x%x" % (WQ + 2, 640 * 8192))
    a("s_mov_b32 s%d, 0x20000" % (WQ + 3))
    a("s_movk_i32 s%d, 1280" % (X + 2))
    a("s_mov_b32 s%d, 0x20000" % (X + 3))
    a("v_lshl_add_u32 v%d, v%d, 13, v%d" % (vA, vG, vE))
    a("s_lshl_b32 s%d, s%d, 2" % (sT2, sSP))
    a("s_add_u32 s%d, s%d, s%d" % (sT2, sT2, sW))
    a("s_mul_i32 s%d, s%d, %d" % (sQ, sT2, 20 * 8192))
    a("s_lshl_b32 s%d, s%d, 8" % (sT0, sH))
    a("s_add_u32 s%d, s%d, s%d" % (sQ, sQ, sT0))
    a("v_lshlrev_b32 v%d, 2, v%d" % (t1, vLANE))
    a("v_mov_b32 v%d, 0xff800000" % (vT + 8))
    a("v_mov_b32 v%d, 0" % (vT + 9))
    a("v_mov_b32 v%d, 0" % (vT + 10))
    a("v_mov_b32 v%d, 0" % (vT + 11))
    a("ds_write_b128 v%d, %s offset:%d" % (vT + 9, vr(vT + 8), L_MX))
    a("ds_write_b32 v%d, v%d offset:%d" % (vT + 9, vT + 9, L_CNT4))
    a("s_waitcnt lgkmcnt(0)")
    stamp(8)
    a("buffer_load_dwordx4 %s, v%d, %s, 0 offen" % (vr(vXS), vL16, srd(X)))
    a("buffer_load_dword v%d, v%d, %s, 0 offen offset:1024" % (vXS + 4, t1, srd(X)))
    a("buffer_load_dword v%d, v%d, %s, 0 offen offset:%d sc1" % (vEP, vT + 9, srd(WS), WS_EPOCH))
    for k in range(5):
        a("buffer_load_dwordx4 %s, v%d, %s, s%d offen %s" % (vr(vWQ + 4 * k), vA, srd(WQ), sQ, qnt))
        if k < 4: a("s_add_u32 s%d, s%d, 0x8000" % (sQ, sQ))
    if not b0late: a("s_barrier")
    a("s_branch L_AUX2")
    a("L_KV:")
    stamp(10)
    a("s_mov_b32 s%d, 0x%x" % (K + 2, 64 << 20))
    a("s_mov_b32 s%d, 0x20000" % (K + 3))
    csp, cw, ca = {0: (16, 14, 12), 2: (14, 12, 17), 5: (16, 12, 14)}[amap]
    a("s_lshl_b32 s%d, s%d, 21" % (sKV, sH))
    a("s_lshl_b32 s%d, s%d, %d" % (sT0, sSP, csp))
    a("s_add_u32 s%d, s%d, s%d" % (sKV, sKV, sT0))
    a("s_lshl_b32 s%d, s%d, %d" % (sT0, sW, cw))
    a("s_add_u32 s%d, s%d, s%d" % (sKV, sKV, sT0))
    a("s_add_u32 s%d, s%d, 0x%x" % (sKV, sKV, 0x180000 - (4 << cw)))
    if hrot:
        a("s_mov_b32 s%d, s%d" % (sT1, sKV))
        for j in range(4):
            a("s_add_u32 s%d, s%d, %d" % (sT0, sH, j))
            a("s_and_b32 s%d, s%d, 3" % (sT0, sT0))
            a("s_lshl_b32 s%d, s%d, %d" % (sT0, sT0, ca))
            a("s_add_u32 s%d, s%d, s%d" % (sKV + j, sT1, sT0))
    else:
        for j in range(1, 4):
            a("s_add_u32 s%d, s%d, 0x%x" % (sKV + j, sKV, j << ca))
    a("v_lshrrev_b32 v%d, 2, v%d" % (t2, vNN))
    a("v_lshlrev_b32 v%d, 8, v%d" % (vA, t2))
    a("v_and_b32 v%d, 3, v%d" % (t3, vNN))
    a("v_lshlrev_b32 v%d, 4, v%d" % (vC, t3))
    a("v_lshl_add_u32 v%d, v%d, 6, v%d" % (vC, vG, vC))
    a("v_add_u32 v%d, v%d, v%d" % (vA, vA, vC))
    a("s_cmp_lt_u32 s2, 232")
    a("s_cbranch_scc1 L_NOPF")
    a("s_cmp_lg_u32 s%d, 4" % sW)
    a("s_cbranch_scc1 L_NOPF")
    a("s_getpc_b64 s[%d:%d]" % (sM, sM + 1))
    for i in range(codekb):
        if i and i % 4 == 0:
            a("s_add_u32 s%d, s%d, 4096" % (sM, sM)); a("s_addc_u32 s%d, s%d, 0" % (sM + 1, sM + 1))
        a("global_load_dwordx4 %s, v%d, s[%d:%d] offset:%d" % (vr(vPF), vL16, sM, sM + 1, (i % 4) * 1024))
    a("L_NOPF:")
    a("s_setprio 1")
    a("s_waitcnt lgkmcnt(0)")
    a("s_barrier")
    stamp(3)
    for L in range(16):
        if khold and L == khold:
            a("v_mov_b32 v%d, 0" % vD)
            a("L_KH:")
            a("ds_read_b32 v%d, v%d offset:%d" % (t2, vD, L_CNT1))
            a("s_waitcnt lgkmcnt(0)")
            a("v_cmp_gt_u32 vcc, 5, v%d" % t2)
            a("s_cbranch_vccnz L_KH")
        a("buffer_load_dwordx4 %s, v%d, %s, s%d offen offset:%d %s" % (vr(vK + 4 * L), vA, srd(K), sKV + L // 4, (L % 4) * 1024, nt))
    stamp(1)
    a("s_setprio 0")
    a("s_mov_b32 s%d, 0x%x" % (V + 2, 64 << 20))
    a("s_mov_b32 s%d, 0x20000" % (V + 3))
    a("v_lshl_add_u32 v%d, v%d, 10, v%d" % (vB, vG, vE))
    for L in range(16):
        a("buffer_load_dwordx4 %s, v%d, %s, s%d offen offset:%d %s" % (vr(vV + 4 * L), vB, srd(V), sKV + L // 4, (L % 4) * 256, nt))
    stamp(4)
    a("s_branch L_KV2")
    a("L_AUX2:")
    a("s_mov_b32 s%d, 0x%x" % (W1 + 2, 640 * 3456))
    a("s_mov_b32 s%d, 0x20000" % (W1 + 3))
    a("s_and_b32 s%d, s2, 15" % sT3)
    a("s_mul_i32 s%d, s%d, 10" % (sT1, sT3))
    a("s_add_u32 s%d, s%d, s%d" % (sT3, sT1, sW))
    a("s_mul_i32 s%d, s%d, %d" % (sW1o, sT3, 4 * 3456))
    a("s_lshr_b32 s%d, s2, 4" % sT1)
    a("s_lshl_b32 s%d, s%d, 8" % (sT1, sT1))
    a("s_add_u32 s%d, s%d, s%d" % (sW1o, sW1o, sT1))
    a("s_cmp_ge_u32 s2, 224")
    a("s_cselect_b32 s%d, 0x%x, s%d" % (sW1o, OOB, sW1o))
    a("v_mul_u32_u24 v%d, 3456, v%d" % (vW1o, vG))
    a("v_add_u32 v%d, v%d, v%d" % (vW1o, vW1o, vE))
    if b0late: a("s_barrier")
    stamp(1)
    for (r, off) in ((B1, 56), (B2, 72), (OUT, 80)):
        a("s_load_dwordx2 s[%d:%d], s[0:1], %d" % (r, r + 1, off))
    for (r, n) in ((B1, 3456), (B2, 1280), (OUT, 1280)):
        a("s_movk_i32 s%d, %d" % (r + 2, n)); a("s_mov_b32 s%d, 0x20000" % (r + 3))
    a("s_mov_b32 s%d, 0x20000" % (W2 + 3))
    a("s_mul_i32 s%d, s%d, 80" % (sT0, sT2))
    a("v_lshl_add_u32 v%d, v%d, 2, s%d" % (vB, vG, sT0))
    a("s_lshl_b32 s%d, s%d, 4" % (sT0, sT3))
    a("v_lshl_add_u32 v%d, v%d, 2, s%d" % (vC, vG, sT0))
    a("s_sub_u32 s%d, s2, 160" % sT0)
    a("s_mul_i32 s%d, s%d, 205" % (sT1, sT0))
    a("s_lshr_b32 s%d, s%d, 10" % (sT1, sT1))
    a("s_mul_i32 s%d, s%d, 5" % (sT2, sT1))
    a("s_sub_u32 s%d, s%d, s%d" % (sT2, sT0, sT2))
    a("s_cmp_ge_u32 s2, 230")
    a("s_cselect_b32 s%d, 2, 1" % sROLE)
    a("s_cmp_lt_u32 s2, 160")
    a("s_cselect_b32 s%d, 0, s%d" % (sROLE, sROLE))
    a("s_cselect_b32 s%d, s%d, s%d" % (sRHO, sH, sT1))
    a("s_cselect_b32 s%d, s%d, s%d" % (sC, sSP, sT2))
    a("s_cselect_b32 s%d, 32, 64" % sT0)
    a("s_mov_b32 s%d, %d" % (W2 + 2, 1728 * 1280))
    a("s_cselect_b32 s%d, %d, s%d" % (W2 + 2, 4096 * 1280, W2 + 2))
    a("s_load_dwordx2 s[%d:%d], s[0:1], s%d" % (W2, W2 + 1, sT0))
    def masks():
        a("v_and_b32 v%d, 1, v%d" % (t3, vNN))
        a("v_lshlrev_b32 v%d, 4, v%d" % (t3, t3))
        a("v_mov_b32 v%d, 0xffff" % (vT + 4))
        a("v_lshlrev_b32 v%d, v%d, v%d" % (t3, t3, vT + 4))
        a("v_lshrrev_b32 v%d, 1, v%d" % (vT + 4, vNN))
        for r in range(4):
            a("v_cmp_eq_u32 s[%d:%d], %d, v%d" % (sM + 2 * r, sM + 2 * r + 1, r, vT + 4))
        a("v_lshlrev_b32 v%d, 3, v%d" % (vL8, vLANE))
        a("s_and_b32 s%d, s%d, 3" % (sT1, sW))
        a("s_lshl_b32 s%d, s%d, 9" % (sT1, sT1))
        a("v_lshl_add_u32 v%d, v%d, 4, s%d" % (vPW, vG, sT1))
        a("v_lshl_add_u32 v%d, v%d, 5, v%d" % (vPW, vNN, vPW))
        for r in range(4):
            a("v_cndmask_b32 v%d, 0, v%d, s[%d:%d]" % (vM + r, t3, sM + 2 * r, sM + 2 * r + 1))
    masks()
    vF = vR
    a("s_waitcnt vmcnt(6)")
    stamp(2)
    for k in range(5):
        a("v_lshlrev_b32 v%d, 16, v%d" % (vF + 2 * k, vXS + k))
        a("v_and_b32 v%d, 0xffff0000, v%d" % (vF + 2 * k + 1, vXS + k))
    a("v_pk_add_f32 %s, %s, %s" % (vr(t0, 2), vr(vF, 2), vr(vF + 2, 2)))
    a("v_pk_add_f32 %s, %s, %s" % (vr(t2, 2), vr(vF + 4, 2), vr(vF + 6, 2)))
    a("v_pk_add_f32 %s, %s, %s" % (vr(t0, 2), vr(t0, 2), vr(vF + 8, 2)))
    a("v_pk_add_f32 %s, %s, %s" % (vr(t0, 2), vr(t0, 2), vr(t2, 2)))
    a("v_add_f32 v%d, v%d, v%d" % (t0, t0, t1))
    def wave_sum(v, sdst):
        for ctl in ("row_ror:8", "row_ror:4", "row_ror:2", "row_ror:1", "row_bcast:15 row_mask:0xa", "row_bcast:31 row_mask:0xc"):
            a("s_nop 1")
            rm = "" if "row_mask" in ctl else " row_mask:0xf"
            a("v_add_f32_dpp v%d, v%d, v%d %s%s bank_mask:0xf" % (v, v, v, ctl, rm))
        a("s_nop 0")
        a("v_readlane_b32 s%d, v%d, 63" % (sdst, v))
    wave_sum(t0, sT1)
    a("v_mov_b32 v%d, %s" % (t1, f32(1.0 / 640)))
    a("s_nop 0")
    a("v_mul_f32 v%d, s%d, v%d" % (t0, sT1, t1))
    vMEAN = vT + 4
    a("v_cvt_pk_bf16_f32 v%d, v%d, v%d" % (vMEAN, t0, t0))
    a("v_and_b32 v%d, 0xffff0000, v%d" % (vMEAN, vMEAN))
    for k in range(10):
        a("v_sub_f32 v%d, v%d, v%d" % (t2 + (k & 1), vF + k, t0))
        if k < 2:
            a("v_mul_f32 v%d, v%d, v%d" % (vT + 6 + (k & 1), t2 + (k & 1), t2 + (k & 1)))
        else:
            a("v_fmac_f32 v%d, v%d, v%d" % (vT + 6 + (k & 1), t2 + (k & 1), t2 + (k & 1)))
    a("v_add_f32 v%d, v%d, v%d" % (t0, vT + 6, vT + 7))
    wave_sum(t0, sT1)
    for k in range(10):
        a("v_sub_f32 v%d, v%d, v%d" % (vF + k, vF + k, vMEAN))
    a("v_mul_f32 v%d, s%d, v%d" % (t0, sT1, t1))
    a("v_cvt_pk_bf16_f32 v%d, v%d, v%d" % (t0, t0, t0))
    a("v_and_b32 v%d, 0xffff0000, v%d" % (t0, t0))
    a("v_add_f32 v%d, %s, v%d" % (t0, f32(1e-5), t0))
    a("v_cvt_pk_bf16_f32 v%d, v%d, v%d" % (t0, t0, t0))
    a("v_and_b32 v%d, 0xffff0000, v%d" % (t0, t0))
    a("v_sqrt_f32 v%d, v%d" % (t0, t0))
    for k in range(5):
        a("v_cvt_pk_bf16_f32 v%d, v%d, v%d" % (vXS + k, vF + 2 * k, vF + 2 * k + 1))
    a("v_cvt_pk_bf16_f32 v%d, v%d, v%d" % (t0, t0, t0))
    a("v_and_b32 v%d, 0xffff0000, v%d" % (t0, t0))
    a("v_rcp_f32 v%d, v%d" % (t0, t0))
    for k in range(5):
        a("v_lshlrev_b32 v%d, 16, v%d" % (vF + 2 * k, vXS + k))
        a("v_and_b32 v%d, 0xffff0000, v%d" % (vF + 2 * k + 1, vXS + k))
    for k in range(10):
        a("v_mul_f32 v%d, v%d, v%d" % (vF + k, vF + k, t0))
    for k in range(10):
        a("v_cvt_pk_bf16_f32 v%d, v%d, v%d" % (vF + k, vF + k, vF + k))
    a("v_lshlrev_b32 v%d, 5, v%d" % (t0, vLANE))
    a("ds_write_b128 v%d, %s" % (t0, vr(vF)))
    a("ds_write_b128 v%d, %s offset:16" % (t0, vr(vF + 4)))
    a("ds_write_b64 v%d, %s offset:2048" % (vL8, vr(vF + 8, 2)))
    stamp(3)
    for i in range(5):
        a("ds_read_b32 v%d, v%d offset:%d" % (vXN + i, vB, 16 * i))
    a("ds_read_b32 v%d, v%d" % (vXN + 5, vC))
    a("ds_read_b32 v%d, v%d offset:64" % (vXN + 6, vC))
    a("ds_read_b32 v%d, v%d offset:%d" % (vXN + 7, vC, 128))
    vGA, vGB, vFA = vA, vB, vC
    a("v_and_b32 v%d, 1, v%d" % (t3, vG))
    a("v_lshlrev_b32 v%d, 3, v%d" % (t3, t3))
    a("v_lshrrev_b32 v%d, 1, v%d" % (t2, vG))
    a("v_add_u32 v%d, v%d, v%d" % (t3, t3, t2))
    a("v_mul_u32_u24 v%d, 1280, v%d" % (vD, t3))
    a("v_add_u32 v%d, v%d, v%d" % (vD, vD, vE))
    a("s_lshl_b32 s%d, s%d, 2" % (sT0, sRHO))
    a("s_add_u32 s%d, s%d, s%d" % (sT0, sT0, sW))
    a("s_mul_i32 s%d, s%d, %d" % (sW2o, sT0, 32 * 1280))
    a("s_lshl_b32 s%d, s%d, 8" % (sT0, sC))
    a("s_add_u32 s%d, s%d, s%d" % (sW2o, sW2o, sT0))
    a("s_waitcnt vmcnt(0) lgkmcnt(0)")
    stamp(4)
    a("v_readfirstlane_b32 s%d, v%d" % (sTAG, vEP))
    def mfma_seq(seq):
        def build(idx):
            A = vA0 if idx % 2 == 0 else vA1
            for r in range(4):
                a("v_and_b32 v%d, v%d, v%d" % (A + r, vM + r, seq[idx][0]))
        build(0)
        for idx in range(len(seq)):
            if idx + 1 < len(seq): build(idx + 1)
            else: a("s_nop 1")
            A = vA0 if idx % 2 == 0 else vA1
            _, B, acc, first = seq[idx]
            a("v_mfma_f32_16x16x32_bf16 %s, %s, %s, %s" % (vr(acc), vr(A), vr(B), "0" if first else vr(acc)))
    mfma_seq([(vXN + i, vWQ + 4 * i, vAQ, i == 0) for i in range(5)])
    a("s_add_u32 s%d, s%d, 1" % (sTAG, sTAG))
    a("v_lshrrev_b32 v%d, 3, v%d" % (vGB, vLANE))
    a("v_and_b32 v%d, 7, v%d" % (t3, vLANE))
    a("s_lshl_b32 s%d, s%d, 8" % (sT0, sW))
    a("v_lshl_add_u32 v%d, v%d, 4, s%d" % (vGA, t3, sT0))
    a("v_mov_b32 v%d, 0" % (vT + 9))
    a("v_mov_b32 v%d, 1" % (vT + 10))
    a("s_mov_b32 exec_hi, 0")
    a("ds_write_b128 v%d, %s offset:%d" % (vPW, vr(vAQ), U_QP * 512))
    a("s_mov_b64 exec, 1")
    a("ds_add_rtn_u32 v%d, v%d, v%d offset:%d" % (t2, vT + 9, vT + 10, L_CNT1))
    a("s_mov_b64 exec, -1")
    a("v_lshl_add_u32 v%d, v%d, 10, v%d" % (vGA, vGB, vGA))
    a("v_lshlrev_b32 v%d, 7, v%d" % (vGB, vGB))
    a("v_mov_b32 v%d, s%d" % (vR + 9, sTAG))
    a("v_mov_b32 v%d, s%d" % (vR + 11, sTAG))
    a("s_lshl_b32 s%d, s%d, 13" % (sGQ, sH))
    a("s_lshl_b32 s%d, s%d, 10" % (sT1, sSP))
    a("s_add_u32 s%d, s%d, s%d" % (sT1, sT1, sGQ))
    a("s_add_u32 s%d, s%d, 0x%x" % (sT1, sT1, WS_Q))
    a("s_add_u32 s%d, s%d, 0x%x" % (sT2, sT1, WS_ALT))
    a("s_lshl_b32 s%d, s%d, 11" % (sT0, sW))
    a("s_add_u32 s%d, s%d, s%d" % (sGQ, sGQ, sT0))
    a("s_add_u32 s%d, s%d, 0x%x" % (sGQ, sGQ, WS_Q + WS_ALT))
    a("s_mov_b32 s%d, 0x%x" % (sSPIN, SPIN))
    def reduce4(unit, dst):
        for k in range(2):
            a("ds_read2st64_b64 %s, v%d offset0:%d offset1:%d" % (vr(dst + 4 * k), vL8, unit + 2 * k, unit + 2 * k + 1))
        a("s_waitcnt lgkmcnt(1)")
        a("v_pk_add_f32 %s, %s, %s" % (vr(dst, 2), vr(dst, 2), vr(dst + 2, 2)))
        a("s_waitcnt lgkmcnt(0)")
        a("v_pk_add_f32 %s, %s, %s" % (vr(dst + 4, 2), vr(dst + 4, 2), vr(dst + 6, 2)))
        a("v_add_f32 v%d, v%d, v%d" % (dst + 8, dst, dst + 4))
        a("v_add_f32 v%d, v%d, v%d" % (dst + 10, dst + 1, dst + 5))
    a("s_waitcnt lgkmcnt(0)")
    a("v_readfirstlane_b32 s%d, v%d" % (sT0, t2))
    a("s_nop 0")
    a("s_cmp_lg_u32 s%d, 3" % sT0)
    a("s_cbranch_scc1 %s" % ("L_WP" if waitpub else "L_QP"))
    reduce4(U_QP, vR)
    a("buffer_store_dwordx4 %s, v%d, %s, s%d offen" % (vr(vR + 8), vL16, srd(WS), sT2))
    a("buffer_store_dwordx4 %s, v%d, %s, s%d offen %s" % (vr(vR + 8), vL16, srd(WS), sT1, st))
    if waitpub:
        a("s_mov_b64 exec, 1")
        a("ds_add_u32 v%d, v%d offset:%d" % (vT + 9, vT + 10, L_CNT1))
        a("s_mov_b64 exec, -1")
    stamp(5)
    if waitpub:
        a("s_branch L_QP")
        a("L_WP:")
        a("ds_read_b32 v%d, v%d offset:%d" % (t2, vT + 9, L_CNT1))
        a("s_waitcnt lgkmcnt(0)")
        a("v_cmp_gt_u32 vcc, 5, v%d" % t2)
        a("s_cbranch_vccnz L_WP")
    a("L_QP:")
    def qloads(r0, r1):
        a("buffer_load_dwordx4 %s, v%d, %s, s%d offen %s" % (vr(r0), vL16, srd(WS), sGQ, ld))
        a("buffer_load_dwordx4 %s, v%d, %s, s%d offen offset:1024 %s" % (vr(r1), vL16, srd(WS), sGQ, ld))
    qloads(vQ0, vQ1)
    a("buffer_load_dwordx4 %s, v%d, %s, s%d offen %s" % (vr(vW1), vW1o, srd(W1), sW1o, nt))
    a("s_add_u32 s%d, s%d, %d" % (sW1o, sW1o, 16 * 3456))
    a("buffer_load_dwordx4 %s, v%d, %s, s%d offen %s" % (vr(vW1 + 4), vW1o, srd(W1), sW1o, nt))
    a("s_add_u32 s%d, s%d, %d" % (sW1o, sW1o, 16 * 3456))
    a("s_cmp_ge_u32 s%d, 2" % sW)
    a("s_cselect_b32 s%d, 0x%x, s%d" % (sW1o, OOB, sW1o))
    a("buffer_load_dwordx4 %s, v%d, %s, s%d offen %s" % (vr(vW1 + 8), vW1o, srd(W1), sW1o, nt))
    a("v_mov_b32 v%d, 0" % vQ3)
    a("v_lshrrev_b32 v%d, 2, v%d" % (vFA, vLANE))
    a("v_mul_u32_u24 v%d, 3072, v%d" % (vFA, vFA))
    a("v_and_b32 v%d, 3, v%d" % (t3, vLANE))
    a("v_lshl_add_u32 v%d, v%d, 4, v%d" % (vFA, t3, vFA))
    a("s_mul_i32 s%d, s%d, %d" % (sFO, sC, 16 * 3072))
    a("s_lshl_b32 s%d, s%d, 6" % (sT1, sRHO))
    a("s_add_u32 s%d, s%d, s%d" % (sFO, sFO, sT1))
    a("s_add_u32 s%d, s%d, 0x%x" % (sFO, sFO, WS_F))
    a("s_lshl_b32 s%d, s%d, 13" % (sGO, sH))
    a("s_add_u32 s%d, s%d, 0x%x" % (sGO, sGO, WS_O + WS_ALT))
    a("s_lshl_b32 s%d, s%d, 10" % (sGM, sH))
    a("s_add_u32 s%d, s%d, 0x%x" % (sGM, sGM, WS_ML + WS_ALT))
    a("s_mov_b32 s%d, %d" % (sDRY, 1 if dry else 0))
    a("s_cmp_eq_u32 s%d, 0" % sROLE)
    a("s_cbranch_scc1 %s" % ("L_DRY0" if dry else "L_C0"))
    a("v_lshrrev_b32 v%d, 5, v%d" % (vT + 5, vLANE))
    a("s_cmp_eq_u32 s%d, 1" % sROLE)
    a("s_cbranch_scc0 L_C2")
    a("v_and_b32 v%d, 7, v%d" % (vT + 6, vLANE))
    a("v_lshl_add_u32 v%d, v%d, 1, v%d" % (vT + 5, vT + 6, vT + 5))
    a("s_lshl_b32 s%d, s%d, 7" % (sT0, sRHO))
    a("s_lshl_b32 s%d, s%d, 5" % (sT1, sW))
    a("s_add_u32 s%d, s%d, s%d" % (sT0, sT0, sT1))
    a("v_add_lshl_u32 v%d, v%d, s%d, 1" % (vQ3, vT + 5, sT0))
    a("s_lshl_b32 s%d, s%d, 14" % (sGO, sRHO))
    a("s_add_u32 s%d, s%d, 0x%x" % (sGO, sGO, WS_H))
    a("s_add_u32 s%d, s%d, 0x2000" % (sGM, sGO))
    a("s_add_u32 s%d, s%d, %d" % (sFO, sFO, 32 * 64))
    a("s_branch %s" % ("L_DRY1" if dry else "L_C0"))
    a("L_C2:")
    a("s_sub_u32 s%d, s2, 230" % sF)
    a("s_lshl_b32 s%d, s%d, 2" % (sF, sF))
    a("s_add_u32 s%d, s%d, s%d" % (sF, sF, sW))
    a("v_and_b32 v%d, 3, v%d" % (vT + 6, vLANE))
    a("v_lshl_add_u32 v%d, v%d, 1, v%d" % (vT + 5, vT + 6, vT + 5))
    a("s_lshl_b32 s%d, s%d, 3" % (sT0, sF))
    a("v_add_lshl_u32 v%d, v%d, s%d, 1" % (vD, vT + 5, sT0))
    a("s_mul_i32 s%d, s%d, 3072" % (sGO, sF))
    a("s_add_u32 s%d, s%d, 0x%x" % (sGO, sGO, WS_F))
    if dry: a("s_branch L_DRY2")
    else: a("s_branch L_C0")
    def tagcheck(bufs):
        tmps = []
        n = 0
        for b in bufs:
            for o in (1, 3):
                a("v_xor_b32 v%d, s%d, v%d" % (vT + n, sTAG, b + o)); tmps.append(vT + n); n += 1
        while len(tmps) > 1:
            if len(tmps) >= 3:
                a("v_or3_b32 v%d, v%d, v%d, v%d" % (tmps[0], tmps[0], tmps[1], tmps[2])); tmps = tmps[3:] + [tmps[0]]
            else:
                a("v_or_b32 v%d, v%d, v%d" % (tmps[0], tmps[0], tmps[1])); tmps = [tmps[0]]
        a("v_cmp_ne_u32 vcc, 0, v%d" % tmps[0])
    def spin():
        a("s_sub_u32 s%d, s%d, 1" % (sSPIN, sSPIN))
        a("s_cbranch_scc1 L_EXIT")
    a("L_QR:")
    spin()
    a("s_cmp_eq_u32 s%d, 0x%x" % (sSPIN, SPIN - nAq))
    a("s_cselect_b32 s%d, 0x%x, 0" % (sT0, WS_ALT))
    a("s_sub_u32 s%d, s%d, s%d" % (sGQ, sGQ, sT0))
    qloads(vQ0, vQ1)
    a("s_waitcnt vmcnt(0)")
    a("L_C0:")
    a("s_mov_b32 s%d, 0" % sDRY)
    a("s_waitcnt vmcnt(3)")
    tagcheck([vQ0, vQ1])
    a("s_cbranch_vccnz L_QR")
    if stamps:
        a("s_sub_u32 s%d, 0x%x, s%d" % (sT0, SPIN, sSPIN))
    a("v_add_f32 v%d, v%d, v%d" % (vQ0, vQ0, vQ1))
    a("v_add_f32 v%d, v%d, v%d" % (vQ0 + 1, vQ0 + 2, vQ1 + 2))
    a("s_lshl_b32 s%d, s%d, 9" % (sT1, sW))
    a("v_add_u32 v%d, s%d, v%d" % (t0, sT1, vL8))
    a("v_mov_b32 v%d, 0" % (vT + 9))
    a("v_mov_b32 v%d, 1" % (vT + 10))
    a("ds_write_b64 v%d, %s offset:%d" % (t0, vr(vQ0, 2), U_Q2 * 512))
    a("s_mov_b64 exec, 1")
    a("ds_add_rtn_u32 v%d, v%d, v%d offset:%d" % (t2, vT + 9, vT + 10, L_CNT3))
    a("s_mov_b64 exec, -1")
    a("s_mov_b32 s%d, 0x%x" % (sSPIN, SPIN))
    a("s_waitcnt lgkmcnt(0)")
    a("v_readfirstlane_b32 s%d, v%d" % (sT1, t2))
    a("s_nop 0")
    a("s_cmp_lg_u32 s%d, 3" % sT1)
    a("s_cbranch_scc1 L_QD")
    reduce4(U_Q2, vR)
    a("v_cvt_pk_bf16_f32 v%d, v%d, v%d" % (vR, vR + 8, vR + 10))
    a("v_lshlrev_b32 v%d, 2, v%d" % (t0, vLANE))
    a("ds_write_b32 v%d, v%d offset:%d" % (t0, vR, L_QB))
    a("ds_write_b32 v%d, v%d offset:%d" % (vT + 9, vR + 9, L_TAG))
    a("s_waitcnt lgkmcnt(0)")
    a("L_QD:")
    a("s_cmp_eq_u32 s%d, 0" % sROLE)
    a("s_cbranch_scc1 L_RC0")
    a("s_cmp_eq_u32 s%d, 1" % sROLE)
    a("s_cbranch_scc0 L_RC2")
    a("buffer_load_short_d16_hi v%d, v%d, %s, 0 offen" % (vCONST, vQ3, srd(B1)))
    a("buffer_load_short_d16_hi v%d, v%d, %s, 0 offen offset:32" % (vEP, vQ3, srd(B1)))
    a("s_waitcnt vmcnt(2)")
    a("s_branch L_RC1")
    a("L_RC2:")
    a("buffer_load_ushort v%d, v%d, %s, 0 offen" % (vPF + 1, vD, srd(OUT)))
    a("s_mov_b32 exec_lo, 0x0000ffff")
    a("s_mov_b32 exec_hi, 0x0000ffff")
    a("buffer_load_short_d16_hi v%d, v%d, %s, 0 offen" % (vCONST, vD, srd(X)))
    a("s_not_b64 exec, exec")
    a("buffer_load_short_d16_hi v%d, v%d, %s, 0 offen" % (vCONST, vD, srd(B2)))
    a("s_mov_b64 exec, -1")
    a("s_waitcnt vmcnt(3)")
    a("s_branch L_RC1")
    a("L_RC0:")
    a("s_waitcnt vmcnt(0)")
    a("L_RC1:")
    a("s_cmp_ge_u32 s%d, 2" % sW)
    a("s_cbranch_scc0 L_XOK")
    a("v_mov_b32 v%d, 0" % (vXN + 7))
    a("L_XOK:")
    mfma_seq([(vXN + 5 + j, vW1 + 4 * j, vAH, j == 0) for j in range(3)])
    a("s_mov_b32 exec_hi, 0")
    a("s_nop 6")
    a("ds_write_b128 v%d, %s offset:%d" % (vPW, vr(vAH), U_HP * 512))
    a("s_mov_b64 exec, 1")
    a("ds_add_rtn_u32 v%d, v%d, v%d offset:%d" % (t2, vT + 9, vT + 10, L_CNT4))
    a("s_mov_b64 exec, -1")
    a("s_waitcnt lgkmcnt(0)")
    a("v_readfirstlane_b32 s%d, v%d" % (sT1, t2))
    a("s_nop 0")
    a("s_cmp_lg_u32 s%d, 3" % sT1)
    a("s_cbranch_scc1 L_HD")
    a("s_cmp_ge_u32 s2, 224")
    a("s_cbranch_scc1 L_HD")
    reduce4(U_HP, vR)
    a("s_lshl_b32 s%d, s2, 10" % sT0)
    a("s_add_u32 s%d, s%d, 0x%x" % (sT0, sT0, WS_H))
    a("buffer_store_dwordx4 %s, v%d, %s, s%d offen %s" % (vr(vR + 8), vL16, srd(WS), sT0, st))
    a("L_HD:")
    a("s_setprio 0")
    stamp(6)
    a("s_barrier")
    def HGATHER():
        a("buffer_load_dwordx4 %s, v%d, %s, s%d offen %s" % (vr(vP0), vGA, srd(WS), sGO, ld))
        a("buffer_load_dwordx4 %s, v%d, %s, s%d offen offset:128 %s" % (vr(vP1), vGA, srd(WS), sGO, ld))
        a("buffer_load_dwordx4 %s, v%d, %s, s%d offen %s" % (vr(vP2), vGA, srd(WS), sGM, ld))
        a("buffer_load_dwordx4 %s, v%d, %s, s%d offen offset:128 %s" % (vr(vP3), vGA, srd(WS), sGM, ld))
    def w2_loads():
        for u in range(2):
            for i in range(4):
                if (u, i) in ((0, 2), (1, 2)): a("s_add_u32 s%d, s%d, 5120" % (sW2o, sW2o))
                if (u, i) == (1, 0): a("s_add_u32 s%d, s%d, %d" % (sW2o, sW2o, 20480 - 5120))
                a("buffer_load_dwordx4 %s, v%d, %s, s%d offen offset:%d %s" % (vr(vW2 + 16 * u + 4 * i), vD, srd(W2), sW2o, (i % 2) * 2560, nt))
    a("s_cmp_eq_u32 s%d, 2" % sROLE)
    a("s_cbranch_scc1 L_FINB")
    if w2at == 1: w2_loads()
    a("s_barrier")
    if w2at == 2: w2_loads()
    a("s_cmp_eq_u32 s%d, 1" % sROLE)
    a("s_cbranch_scc1 L_R1PRE")
    stamp(7)
    a("s_barrier")
    stamp(9)
    def altswitch():
        a("s_cmp_eq_u32 s%d, 0x%x" % (sSPIN, SPIN - nA))
        a("s_cselect_b32 s%d, 0x%x, 0" % (sT0, WS_ALT))
        a("s_sub_u32 s%d, s%d, s%d" % (sGO, sGO, sT0))
        a("s_sub_u32 s%d, s%d, s%d" % (sGM, sGM, sT0))
    def oloads():
        a("buffer_load_dwordx4 %s, v%d, %s, s%d offen %s" % (vr(vP0), vGA, srd(WS), sGO, ld))
        a("buffer_load_dwordx4 %s, v%d, %s, s%d offen offset:128 %s" % (vr(vP1), vGA, srd(WS), sGO, ld))
    a("L_MR:")
    spin(); altswitch()
    a("buffer_load_dwordx4 %s, v%d, %s, s%d offen %s" % (vr(vP2), vGB, srd(WS), sGM, ld))
    oloads()
    a("s_waitcnt vmcnt(2)")
    stamp(10)
    tagcheck([vP2])
    a("s_cbranch_vccnz L_MR")
    a("L_DRY0:")
    def allred(v, tmp, op):
        a("s_nop 1")
        a("v_%s_f32_dpp v%d, v%d, v%d row_ror:8 %s" % (op, v, v, v, DPP))
        for sw in ("16", "32"):
            a("v_mov_b32 v%d, v%d" % (tmp, v))
            a("s_nop 1")
            a("v_permlane%s_swap_b32 v%d, v%d" % (sw, v, tmp))
            a("v_%s_f32 v%d, v%d, v%d" % (op, v, v, tmp))
    a("v_mov_b32 v%d, v%d" % (t0, vP2))
    allred(t0, t1, "max")
    a("v_sub_f32 v%d, v%d, v%d" % (t0, vP2, t0))
    a("v_mul_f32 v%d, %s, v%d" % (t0, f32(LOG2E), t0))
    a("v_exp_f32 v%d, v%d" % (vFAC, t0))
    a("s_nop 0")
    a("v_mul_f32 v%d, v%d, v%d" % (t2, vFAC, vP2 + 2))
    allred(t2, t1, "add")
    a("v_rcp_f32 v%d, v%d" % (t2, t2))
    a("s_cmp_eq_u32 s%d, 1" % sDRY)
    a("v_mul_f32 v%d, v%d, v%d" % (vFAC, vFAC, t2))
    a("s_cbranch_scc1 L_OK0")
    a("s_branch L_OC")
    a("L_OR:")
    spin(); altswitch()
    oloads()
    a("L_OC:")
    a("s_waitcnt vmcnt(0)")
    tagcheck([vP0, vP1])
    a("s_cbranch_vccnz L_OR")
    stamp(11)
    a("L_OK0:")
    for b in (vP0, vP1):
        a("v_mul_f32 v%d, v%d, v%d" % (b, b, vFAC))
        a("v_mul_f32 v%d, v%d, v%d" % (b + 2, b + 2, vFAC))
    def tred2():
        a("s_nop 0")
        a("v_permlane32_swap_b32 v%d, v%d" % (vP0, vP0 + 2))
        a("v_permlane32_swap_b32 v%d, v%d" % (vP1, vP1 + 2))
        a("v_add_f32 v%d, v%d, v%d" % (vP0, vP0, vP0 + 2))
        a("v_add_f32 v%d, v%d, v%d" % (vP1, vP1, vP1 + 2))
        a("v_mov_b32 v%d, v%d" % (vP0 + 2, vP0))
        a("v_mov_b32 v%d, v%d" % (vP1 + 2, vP1))
        a("s_nop 0")
        a("v_permlane16_swap_b32 v%d, v%d" % (vP0, vP0 + 2))
        a("v_permlane16_swap_b32 v%d, v%d" % (vP1, vP1 + 2))
        a("v_add_f32 v%d, v%d, v%d" % (vP0, vP0, vP0 + 2))
        a("v_add_f32 v%d, v%d, v%d" % (vP1, vP1, vP1 + 2))
        a("s_nop 0")
        a("v_add_f32_dpp v%d, v%d, v%d row_ror:8 %s" % (vP0, vP0, vP0, DPP))
        a("v_add_f32_dpp v%d, v%d, v%d row_ror:8 %s" % (vP1, vP1, vP1, DPP))
    tred2()
    a("L_GEMV2:")
    a("v_cvt_pk_bf16_f32 v%d, v%d, v%d" % (vP0, vP0, vP0))
    a("v_cvt_pk_bf16_f32 v%d, v%d, v%d" % (vP1, vP1, vP1))
    a("s_nop 0")
    a("v_mov_b32_dpp v%d, v%d row_ror:4 row_mask:0xa bank_mask:0xf" % (vP0, vP0))
    a("v_mov_b32_dpp v%d, v%d row_ror:4 row_mask:0xa bank_mask:0xf" % (vP1, vP1))
    a("s_nop 0")
    for k in range(8):
        for r in range(4):
            a("v_and_b32_dpp v%d, v%d, v%d row_newbcast:%d %s" % (vPA2 + 4 * k + r, vP0 if k < 4 else vP1, vM + r, k % 4, DPP))
        if k >= 1:
            a("v_mfma_f32_16x16x32_bf16 %s, %s, %s, %s" % (vr(vAQ), vr(vPA2 + 4 * (k - 1)), vr(vW2 + 4 * (k - 1)), "0" if k == 1 else vr(vAQ)))
    a("s_cmp_eq_u32 s%d, 1" % sDRY)
    a("s_nop 0")
    a("v_mfma_f32_16x16x32_bf16 %s, %s, %s, %s" % (vr(vAQ), vr(vPA2 + 28), vr(vW2 + 28), vr(vAQ)))
    a("s_mov_b32 exec_hi, 0")
    a("s_nop 6")
    a("ds_write_b128 v%d, %s offset:%d" % (vPW, vr(vAQ), U_FP * 512))
    a("s_mov_b32 exec_hi, -1")
    a("s_waitcnt lgkmcnt(0)")
    a("s_cbranch_scc1 L_DRYP")
    a("s_barrier")
    stamp(12)
    a("s_cmp_lg_u32 s%d, 0" % sW)
    a("s_cbranch_scc1 L_EXIT")
    a("L_DRYP:")
    reduce4(U_FP, vR)
    a("s_cmp_eq_u32 s%d, 1" % sDRY)
    a("s_cbranch_scc1 L_C0")
    a("buffer_store_dwordx4 %s, v%d, %s, s%d offen %s" % (vr(vR + 8), vFA, srd(WS), sFO, st))
    a("s_branch L_EXIT")
    a("L_R1PRE:")
    HGATHER()
    stamp(7)
    a("s_barrier")
    stamp(9)
    a("s_branch L_R1")
    a("L_POLL1:")
    spin()
    HGATHER()
    a("L_R1:")
    a("s_waitcnt vmcnt(0)")
    tagcheck([vP0, vP1, vP2, vP3])
    a("s_cbranch_vccnz L_POLL1")
    stamp(11)
    a("L_DRY1:")
    a("v_add_f32 v%d, v%d, v%d" % (vP0, vP0, vP2))
    a("v_add_f32 v%d, v%d, v%d" % (vP0 + 2, vP0 + 2, vP2 + 2))
    a("v_add_f32 v%d, v%d, v%d" % (vP1, vP1, vP3))
    a("v_add_f32 v%d, v%d, v%d" % (vP1 + 2, vP1 + 2, vP3 + 2))
    tred2()
    k0 = -2.0 * 0.7978845608028654 * LOG2E
    for (b, cst, ta, tb) in ((vP0, vCONST, t0, t1), (vP1, vEP, t2, t3)):
        a("v_cvt_pk_bf16_f32 v%d, v%d, v%d" % (b, b, b))
        a("v_and_b32 v%d, 0xffff0000, v%d" % (b, b))
        a("v_and_b32 v%d, 0xffff0000, v%d" % (ta, cst))
        a("v_add_f32 v%d, v%d, v%d" % (b, b, ta))
        a("v_cvt_pk_bf16_f32 v%d, v%d, v%d" % (b, b, b))
        a("v_and_b32 v%d, 0xffff0000, v%d" % (b, b))
        a("v_mul_f32 v%d, v%d, v%d" % (ta, b, b))
        a("v_mov_b32 v%d, %s" % (tb, f32(k0)))
        a("v_fmac_f32 v%d, %s, v%d" % (tb, f32(k0 * 0.044715), ta))
        a("v_mul_f32 v%d, v%d, v%d" % (ta, tb, b))
        a("v_exp_f32 v%d, v%d" % (ta, ta))
        a("s_nop 0")
        a("v_add_f32 v%d, 1.0, v%d" % (ta, ta))
        a("v_rcp_f32 v%d, v%d" % (ta, ta))
        a("s_nop 0")
        a("v_mul_f32 v%d, v%d, v%d" % (b, b, ta))
    a("s_lshl_b32 s%d, s%d, 2" % (sT0, sRHO))
    a("s_add_u32 s%d, s%d, s%d" % (sT0, sT0, sW))
    a("s_cmp_lt_u32 s%d, 54" % sT0)
    a("s_cbranch_scc1 L_GEMV2")
    a("v_mov_b32 v%d, 0" % vP0)
    a("v_mov_b32 v%d, 0" % vP1)
    a("s_branch L_GEMV2")
    a("L_FINB:")
    a("s_barrier")
    a("s_barrier")
    stamp(9)
    a("s_cmp_ge_u32 s%d, 80" % sF)
    a("s_cbranch_scc1 L_EXIT")
    a("v_mov_b32 v%d, 0" % vP2)
    a("v_mov_b32 v%d, s%d" % (vP2 + 1, sTAG))
    a("v_mov_b32 v%d, 0" % (vP2 + 2))
    a("v_mov_b32 v%d, s%d" % (vP2 + 3, sTAG))
    a("L_POLL2:")
    spin()
    a("buffer_load_dwordx4 %s, v%d, %s, s%d offen %s" % (vr(vP0), vL16, srd(WS), sGO, ld))
    a("buffer_load_dwordx4 %s, v%d, %s, s%d offen offset:1024 %s" % (vr(vP1), vL16, srd(WS), sGO, ld))
    a("s_mov_b32 exec_hi, 0x00ffffff")
    a("buffer_load_dwordx4 %s, v%d, %s, s%d offen offset:2048 %s" % (vr(vP2), vL16, srd(WS), sGO, ld))
    a("s_mov_b32 exec_hi, -1")
    a("s_waitcnt vmcnt(0)")
    tagcheck([vP0, vP1, vP2])
    a("s_cbranch_vccnz L_POLL2")
    stamp(12)
    a("L_DRY2:")
    a("v_add_f32 v%d, v%d, v%d" % (vP0, vP0, vP1))
    a("v_add_f32 v%d, v%d, v%d" % (vP0 + 2, vP0 + 2, vP1 + 2))
    a("v_permlane32_swap_b32 v%d, v%d" % (vP2, vP2 + 2))
    a("v_add_f32 v%d, v%d, v%d" % (vP2, vP2, vP2 + 2))
    a("v_permlane32_swap_b32 v%d, v%d" % (vP0, vP0 + 2))
    a("v_add_f32 v%d, v%d, v%d" % (vP0, vP0, vP0 + 2))
    a("v_and_b32 v%d, 0xffff0000, v%d" % (t2, vCONST))
    a("s_nop 0")
    a("v_permlane16_swap_b32 v%d, v%d" % (vP0, vP2))
    a("v_add_f32 v%d, v%d, v%d" % (vP0, vP0, vP2))
    a("s_nop 1")
    a("v_add_f32_dpp v%d, v%d, v%d row_ror:4 %s" % (vP0, vP0, vP0, DPP))
    a("s_nop 1")
    a("v_add_f32_dpp v%d, v%d, v%d row_ror:8 %s" % (vP0, vP0, vP0, DPP))
    a("v_cvt_pk_bf16_f32 v%d, v%d, v%d" % (vP0, vP0, vP0))
    a("v_and_b32 v%d, 0xffff0000, v%d" % (vP0, vP0))
    a("v_add_f32 v%d, v%d, v%d" % (vP0, vP0, t2))
    a("v_cvt_pk_bf16_f32 v%d, v%d, v%d" % (vP0, vP0, vP0))
    a("v_and_b32 v%d, 0xffff0000, v%d" % (vP0, vP0))
    a("v_mov_b32 v%d, v%d" % (t1, vP0))
    a("s_cmp_eq_u32 s%d, 1" % sDRY)
    a("s_nop 0")
    a("v_permlane16_swap_b32 v%d, v%d" % (vP0, t1))
    a("v_add_f32 v%d, v%d, v%d" % (vP0, vP0, t1))
    a("v_cvt_pk_bf16_f32 v%d, v%d, v%d" % (vP0, vP0, vP0))
    a("s_cbranch_scc1 L_C0")
    a("s_mov_b32 exec_lo, 0xf")
    a("s_mov_b32 exec_hi, 0xf")
    a("buffer_store_short v%d, v%d, %s, 0 offen %s" % (vP0, vD, srd(OUT), outfl))
    a("s_cmp_lg_u32 s%d, 0" % sF)
    a("s_cbranch_scc1 L_EXIT")
    a("s_mov_b64 exec, 1")
    a("v_mov_b32 v%d, 0" % t0)
    a("v_mov_b32 v%d, s%d" % (t1, sTAG))
    a("buffer_store_dword v%d, v%d, %s, 0 offen offset:%d" % (t1, t0, srd(WS), WS_EPOCH))
    a("s_branch L_EXIT")
    a("L_KV2:")
    a("s_setprio 1")
    masks()
    for r in range(16):
        a("v_mov_b32 v%d, 0" % (vAT + r))
    a("v_mov_b32 v%d, 0" % vD)
    a("s_lshl_b32 s%d, s%d, 3" % (sT1, sH))
    a("s_add_u32 s%d, s%d, s%d" % (sT1, sT1, sSP))
    a("s_lshl_b32 s%d, s%d, 10" % (sQ, sT1))
    a("s_add_u32 s%d, s%d, 0x%x" % (sQ, sQ, WS_O))
    a("s_add_u32 s%d, s%d, 0x%x" % (sW1o, sQ, WS_ALT))
    a("s_lshl_b32 s%d, s%d, 7" % (sW2o, sT1))
    a("s_add_u32 s%d, s%d, 0x%x" % (sW2o, sW2o, WS_ML))
    a("s_add_u32 s%d, s%d, 0x%x" % (sF, sW2o, WS_ALT))
    stamp(5)
    a("s_barrier")
    stamp(6)
    for t in range(4):
        a("s_mov_b32 exec_lo, 0x%08x" % (0x000f000f << (4 * t)))
        a("s_mov_b32 exec_hi, 0x%08x" % (0x000f000f << (4 * t)))
        a("ds_read_b128 %s, v%d offset:%d" % (vr(vAT + 4 * t), vC, L_QB))
    a("s_mov_b64 exec, -1")
    a("ds_read_b32 v%d, v%d offset:%d" % (vEP, vD, L_TAG))
    a("s_waitcnt vmcnt(16) lgkmcnt(1)")
    for L in range(16):
        acc = vS + 4 * (L // 4)
        a("v_mfma_f32_16x16x32_bf16 %s, %s, %s, %s" % (vr(acc), vr(vAT + 4 * (L % 4)), vr(vK + 4 * L), "0" if L % 4 == 0 else vr(acc)))
    sc = [vT + 8, vT + 9, vT + 10, vT + 11]
    for k in range(4):
        for j in range(4):
            if k == 0:
                if j == 2: a("s_nop 1")
                if j == 3: a("s_nop 2")
                a("v_mov_b32_dpp v%d, v%d quad_perm:[0,0,0,0] %s" % (sc[j], vS + 4 * j, DPP))
            else:
                a("v_add_f32_dpp v%d, v%d, v%d quad_perm:[%d,%d,%d,%d] %s" % (sc[j], vS + 4 * j + k, sc[j], k, k, k, k, DPP))
    for rnd in range(2):
        a("v_cvt_pk_bf16_f32 v%d, v%d, v%d" % (t0, sc[0], sc[1]))
        a("v_cvt_pk_bf16_f32 v%d, v%d, v%d" % (t1, sc[2], sc[3]))
        a("v_lshlrev_b32 v%d, 16, v%d" % (sc[0], t0))
        a("v_and_b32 v%d, 0xffff0000, v%d" % (sc[1], t0))
        a("v_lshlrev_b32 v%d, 16, v%d" % (sc[2], t1))
        a("v_and_b32 v%d, 0xffff0000, v%d" % (sc[3], t1))
        if rnd == 0:
            for j in range(4):
                a("v_mul_f32 v%d, %s, v%d" % (sc[j], f32(128 ** -0.5), sc[j]))
    a("v_max_f32 v%d, v%d, v%d" % (t2, sc[0], sc[1]))
    a("v_max3_f32 v%d, v%d, v%d, v%d" % (t2, sc[2], sc[3], t2))
    a("s_mov_b32 exec_lo, 0x11111111")
    a("s_mov_b32 exec_hi, 0x11111111")
    a("ds_max_f32 v%d, v%d offset:%d" % (vD, t2, L_MX))
    a("s_mov_b64 exec, -1")
    a("s_waitcnt lgkmcnt(0)")
    a("s_barrier")
    vRk = 36
    vMX = vRk + 12
    a("ds_read_b32 v%d, v%d offset:%d" % (vMX, vD, L_MX))
    stamp(7)
    for o in (9, 11, 13, 15):
        a("v_mov_b32 v%d, v%d" % (vRk + o, vEP))
    a("s_waitcnt lgkmcnt(0)")
    for j in range(4): a("v_sub_f32 v%d, v%d, v%d" % (sc[j], sc[j], vMX))
    for j in range(4): a("v_mul_f32 v%d, %s, v%d" % (sc[j], f32(LOG2E), sc[j]))
    for j in range(4): a("v_exp_f32 v%d, v%d" % (sc[j], sc[j]))
    a("v_add_f32 v%d, v%d, v%d" % (t2, sc[0], sc[1]))
    a("v_add_f32 v%d, v%d, v%d" % (t1, sc[2], sc[3]))
    for j in range(4): a("v_cvt_pk_bf16_f32 v%d, v%d, v%d" % (sc[j], sc[j], sc[j]))
    a("v_add_f32 v%d, v%d, v%d" % (t2, t2, t1))
    pa = [(aa, i, r) for aa in range(4) for i in range(4) for r in range(4)]
    def pab(n):
        for _ in range(n):
            aa, i, r = pa.pop(0)
            a("v_and_b32_dpp v%d, v%d, v%d row_newbcast:%d %s" % (vK + 16 * aa + 4 * i + r, sc[aa], vM + r, 4 * i, DPP))
    pab(2)
    for ctl in ("row_ror:4 row_mask:0xf", "row_ror:8 row_mask:0xf", "row_bcast:15 row_mask:0xa", "row_bcast:31 row_mask:0xc"):
        a("v_add_f32_dpp v%d, v%d, v%d %s bank_mask:0xf" % (t2, t2, t2, ctl))
        pab(2)
    a("s_lshl_b32 s%d, s%d, 2" % (sT0, sW))
    a("v_mov_b32 v%d, s%d" % (t3, sT0))
    a("v_mov_b32 v%d, 1" % t1)
    a("s_mov_b32 exec_lo, 0")
    a("s_mov_b32 exec_hi, 0x80000000")
    a("ds_write_b32 v%d, v%d offset:%d" % (t3, t2, L_LS - 16))
    a("ds_add_rtn_u32 v%d, v%d, v%d offset:%d" % (t0, vD, t1, L_CNT2))
    a("s_mov_b64 exec, -1")
    pab(len(pa))
    a("s_waitcnt lgkmcnt(0)")
    a("v_readlane_b32 s%d, v%d, 63" % (sT0, t0))
    a("s_nop 0")
    a("s_cmp_lg_u32 s%d, 3" % sT0)
    a("s_cbranch_scc1 L_NOML")
    a("ds_read_b128 %s, v%d offset:%d" % (vr(vRk), vD, L_LS))
    a("s_mov_b64 exec, 0xff")
    a("s_waitcnt lgkmcnt(0)")
    a("v_pk_add_f32 %s, %s, %s" % (vr(vRk, 2), vr(vRk, 2), vr(vRk + 2, 2)))
    a("v_add_f32 v%d, v%d, v%d" % (vRk + 14, vRk, vRk + 1))
    a("buffer_store_dwordx4 %s, v%d, %s, s%d offen" % (vr(vRk + 12), vL16, srd(WS), sF))
    a("buffer_store_dwordx4 %s, v%d, %s, s%d offen %s" % (vr(vRk + 12), vL16, srd(WS), sW2o, st))
    a("s_mov_b64 exec, -1")
    def pv(extra):
        for k in range(16):
            a("s_waitcnt vmcnt(%d)" % (15 - k + extra))
            a("v_mfma_f32_16x16x32_bf16 %s, %s, %s, %s" % (vr(vO), vr(vK + 4 * k), vr(vV + 4 * k), "0" if k == 0 else vr(vO)))
    pv(2)
    a("s_branch L_PVD")
    a("L_NOML:")
    stamp(8)
    pv(0)
    a("L_PVD:")
    a("s_mov_b32 exec_hi, 0")
    a("s_nop 6")
    a("ds_write_b128 v%d, %s offset:%d" % (vPW, vr(vO), U_OP * 512))
    a("s_mov_b32 exec_hi, -1")
    a("s_waitcnt lgkmcnt(0)")
    a("s_cmp_lg_u32 s%d, 4" % sW)
    a("s_barrier")
    stamp(9)
    a("s_cbranch_scc1 L_EXIT")
    reduce4(U_OP, vRk)
    a("buffer_store_dwordx4 %s, v%d, %s, s%d offen" % (vr(vRk + 8), vL16, srd(WS), sW1o))
    a("buffer_store_dwordx4 %s, v%d, %s, s%d offen %s" % (vr(vRk + 8), vL16, srd(WS), sQ, st))
    a("L_EXIT:")
    if stamps:
        a("s_waitcnt vmcnt(0)")
        stamp(13)
        a("s_waitcnt lgkmcnt(0)")
        a("s_lshl_b32 s%d, s2, 3" % sT0)
        a("s_add_u32 s%d, s%d, s%d" % (sT0, sT0, sW))
        a("s_lshl_b32 s%d, s%d, 7" % (sT0, sT0))
        a("s_add_u32 s%d, s%d, 0x%x" % (sT0, sT0, WS_ST))
        a("s_mov_b64 exec, 1")
        a("v_mov_b32 v1, 0")
        for i in range(16):
            if i < NST:
                a("v_mov_b32 v2, s%d" % (72 + 2 * i)); a("v_mov_b32 v3, s%d" % (73 + 2 * i))
            else:
                a("v_mov_b32 v2, 0"); a("v_mov_b32 v3, 0")
            a("buffer_store_dwordx2 v[2:3], v1, %s, s%d offen offset:%d" % (srd(WS), sT0, i * 8))
            a("s_nop 1")
    a("L_END:")
    a("s_endpgm")
    body = a.text()
    errs = hazard.check(body)
    if errs:
        print("\n".join(errs)); raise SystemExit("hazards")
    return wrap(body, 256, 512, LDS_BYTES, NV, sgpr=102)

if __name__ == "__main__":
    open("k10.s", "w").write(gen())
    for kh in (2, 4, 6, 8, 12):
        open("k10s_kh%d.s" % kh, "w").write(gen(stamps=True, khold=kh))
    open("k10s_a0.s", "w").write(gen(stamps=True, amap=0))
    open("k10s_w1.s", "w").write(gen(stamps=True, w2at=1))
```

```python
import sys, struct
from glib import *
import hazard

def f32(x):
    return "0x%08x" % struct.unpack("<I", struct.pack("<f", x))[0]

WS_EPOCH = 0
WS_ML = 0x8000
WS_O = 0x10000
WS_Q = 0x50000
WS_H = 0x90000
WS_F = 0xD0000
WS_ALT = 0x110000
WS_ST = 0x8000000
U_XN, U_QP, U_HP, U_Q2, U_OP, U_FP, U_MISC = 0, 5, 9, 13, 17, 21, 25
L_QB = U_MISC * 512
L_MX = L_QB + 256
L_CNT1 = L_QB + 260
L_CNT2 = L_QB + 264
L_CNT3 = L_QB + 268
L_LS = L_QB + 272
L_TAG = L_QB + 288
L_CNT4 = L_QB + 292
L_CNT5 = L_QB + 296
L_CNT6 = L_QB + 300
L_CNT7 = L_QB + 304
L_QRDY = L_QB + 308
L_CNT8 = L_QB + 312
L_USEB = L_QB + 316
LDS_BYTES = L_QB + 512
OOB = 0x7ff00000
NST = 14
LOG2E = 1.4426950408889634
SPIN = 0x40000

def gen(stamps=False, codekb=7, nt="nt", qnt="nt", st="sc1", ld="sc1", w2at=2, nA=32, nAq=12, dry=True, outfl="",
        amap=2, hrot=0, waitpub=True, pipeq=False, b0late=False, khold=4, thr=True, w2wait=0, fwait=True, dwait=False, ackpub=False):
    a = Asm()
    def stamp(k):
        if stamps: a("s_memrealtime s[%d:%d]" % (72 + 2 * k, 73 + 2 * k))
    X, K, V, WQ, W2, W1, B1, B2, OUT, WS = 4, 8, 12, 16, 20, 24, 28, 32, 36, 40
    sH, sSP, sW, sROLE, sTAG, sT3, sT0, sT1, sT2, sRHO, sC, sSPIN, sQ, sW1o, sW2o, sF = range(44, 60)
    sM = 60
    sKV = 68
    sDRY = 3
    sTAGA = 65
    sGO, sGM, sFO, sGQ = 60, 61, 62, 63
    def srd(n): return "s[%d:%d]" % (n, n + 3)
    def vr(n, c=4): return "v[%d:%d]" % (n, n + c - 1)
    vLANE, vG, vNN = 1, 2, 3
    vT = 4
    t0, t1, t2, t3 = vT, vT + 1, vT + 2, vT + 3
    vM = 16
    vA, vB, vC, vD, vPW, vL8, vL16, vE, vCONST, vEP = range(20, 30)
    vXS = 30
    vW1o = 35
    vR = 36
    vXN = 52
    vA0, vA1 = 60, 64
    vAQ, vAH = 68, 72
    vWQ = 76
    vW1 = 96
    vW2 = 108
    vPA2 = 140
    vP0, vP1, vP2, vP3 = 172, 176, 180, 184
    vFAC = 188
    vQ0, vQ1, vQ2, vQ3 = 192, 196, 200, 204
    vPF = 208
    vK, vV, vAT, vS, vO = 80, 144, 36, 60, 76
    NV = 212
    DPP = "row_mask:0xf bank_mask:0xf"

    a("s_cmp_ge_u32 s2, 256")
    a("s_cbranch_scc1 L_END")
    if stamps:
        for k in range(NST): a("s_mov_b64 s[%d:%d], 0" % (72 + 2 * k, 73 + 2 * k))
    stamp(0)
    if stamps: a("s_mov_b32 s100, 0")
    for (r, off) in ((X, 0), (WQ, 24), (K, 8), (V, 16), (W1, 48), (WS, 96)):
        a("s_load_dwordx2 s[%d:%d], s[0:1], %d" % (r, r + 1, off))
    a("v_lshrrev_b32 v%d, 6, v0" % vT)
    a("v_and_b32 v%d, 63, v0" % vLANE)
    a("v_readfirstlane_b32 s%d, v%d" % (sW, vT))
    a("s_and_b32 s%d, s2, 31" % sH)
    a("s_lshr_b32 s%d, s2, 5" % sSP)
    a("v_lshlrev_b32 v%d, 4, v%d" % (vL16, vLANE))
    a("v_lshrrev_b32 v%d, 4, v%d" % (vG, vLANE))
    a("v_and_b32 v%d, 15, v%d" % (vNN, vLANE))
    a("v_lshlrev_b32 v%d, 4, v%d" % (vE, vNN))
    a("s_mov_b32 s%d, 0x%x" % (WS + 2, 256 << 20))
    a("s_mov_b32 s%d, 0x20000" % (WS + 3))
    a("s_cmp_ge_u32 s%d, 4" % sW)
    a("s_cbranch_scc1 L_KV")
    a("s_setprio 3")
    a("s_mov_b32 s%d, 0x%x" % (WQ + 2, 640 * 8192))
    a("s_mov_b32 s%d, 0x20000" % (WQ + 3))
    a("s_movk_i32 s%d, 1280" % (X + 2))
    a("s_mov_b32 s%d, 0x20000" % (X + 3))
    a("v_lshl_add_u32 v%d, v%d, 13, v%d" % (vA, vG, vE))
    a("s_lshl_b32 s%d, s%d, 2" % (sT2, sSP))
    a("s_add_u32 s%d, s%d, s%d" % (sT2, sT2, sW))
    a("s_mul_i32 s%d, s%d, %d" % (sQ, sT2, 20 * 8192))
    a("s_lshl_b32 s%d, s%d, 8" % (sT0, sH))
    a("s_add_u32 s%d, s%d, s%d" % (sQ, sQ, sT0))
    a("v_lshlrev_b32 v%d, 2, v%d" % (t1, vLANE))
    a("v_mov_b32 v%d, 0xff800000" % (vT + 8))
    a("v_mov_b32 v%d, 0" % (vT + 9))
    a("v_mov_b32 v%d, 0" % (vT + 10))
    a("v_mov_b32 v%d, 0" % (vT + 11))
    a("ds_write_b128 v%d, %s offset:%d" % (vT + 9, vr(vT + 8), L_MX))
    a("v_mov_b32 v%d, 0" % (vT + 8))
    a("ds_write_b128 v%d, %s offset:%d" % (vT + 9, vr(vT + 8), L_TAG))
    a("ds_write_b128 v%d, %s offset:%d" % (vT + 9, vr(vT + 8), L_CNT7))
    a("s_waitcnt lgkmcnt(0)")
    stamp(8)
    a("buffer_load_dwordx4 %s, v%d, %s, 0 offen" % (vr(vXS), vL16, srd(X)))
    a("buffer_load_dword v%d, v%d, %s, 0 offen offset:1024" % (vXS + 4, t1, srd(X)))
    a("buffer_load_dword v%d, v%d, %s, 0 offen offset:%d sc1" % (vEP, vT + 9, srd(WS), WS_EPOCH))
    for k in range(5):
        a("buffer_load_dwordx4 %s, v%d, %s, s%d offen %s" % (vr(vWQ + 4 * k), vA, srd(WQ), sQ, qnt))
        if k < 4: a("s_add_u32 s%d, s%d, 0x8000" % (sQ, sQ))
    if not b0late: a("s_barrier")
    a("s_branch L_AUX2")
    a("L_KV:")
    stamp(10)
    a("s_mov_b32 s%d, 0x%x" % (K + 2, 64 << 20))
    a("s_mov_b32 s%d, 0x20000" % (K + 3))
    csp, cw, ca = {0: (16, 14, 12), 2: (14, 12, 17), 5: (16, 12, 14)}[amap]
    a("s_lshl_b32 s%d, s%d, 21" % (sKV, sH))
    a("s_lshl_b32 s%d, s%d, %d" % (sT0, sSP, csp))
    a("s_add_u32 s%d, s%d, s%d" % (sKV, sKV, sT0))
    a("s_lshl_b32 s%d, s%d, %d" % (sT0, sW, cw))
    a("s_add_u32 s%d, s%d, s%d" % (sKV, sKV, sT0))
    a("s_add_u32 s%d, s%d, 0x%x" % (sKV, sKV, 0x180000 - (4 << cw)))
    if hrot:
        a("s_mov_b32 s%d, s%d" % (sT1, sKV))
        for j in range(4):
            a("s_add_u32 s%d, s%d, %d" % (sT0, sH, j))
            a("s_and_b32 s%d, s%d, 3" % (sT0, sT0))
            a("s_lshl_b32 s%d, s%d, %d" % (sT0, sT0, ca))
            a("s_add_u32 s%d, s%d, s%d" % (sKV + j, sT1, sT0))
    else:
        for j in range(1, 4):
            a("s_add_u32 s%d, s%d, 0x%x" % (sKV + j, sKV, j << ca))
    a("v_lshrrev_b32 v%d, 2, v%d" % (t2, vNN))
    a("v_lshlrev_b32 v%d, 8, v%d" % (vA, t2))
    a("v_and_b32 v%d, 3, v%d" % (t3, vNN))
    a("v_lshlrev_b32 v%d, 4, v%d" % (vC, t3))
    a("v_lshl_add_u32 v%d, v%d, 6, v%d" % (vC, vG, vC))
    a("v_add_u32 v%d, v%d, v%d" % (vA, vA, vC))
    a("s_cmp_lt_u32 s2, 232")
    a("s_cbranch_scc1 L_NOPF")
    a("s_cmp_lg_u32 s%d, 4" % sW)
    a("s_cbranch_scc1 L_NOPF")
    a("s_getpc_b64 s[%d:%d]" % (sM, sM + 1))
    for i in range(codekb):
        if i and i % 4 == 0:
            a("s_add_u32 s%d, s%d, 4096" % (sM, sM)); a("s_addc_u32 s%d, s%d, 0" % (sM + 1, sM + 1))
        a("global_load_dwordx4 %s, v%d, s[%d:%d] offset:%d" % (vr(vPF), vL16, sM, sM + 1, (i % 4) * 1024))
    a("L_NOPF:")
    a("s_setprio 2")
    a("s_waitcnt lgkmcnt(0)")
    a("s_barrier")
    stamp(3)
    def kload(L):
        a("buffer_load_dwordx4 %s, v%d, %s, s%d offen offset:%d %s" % (vr(vK + 4 * L), vA, srd(K), sKV + L // 4, (L % 4) * 1024, nt))
    a("v_mov_b32 v%d, 0" % vD)
    for L in range(16):
        if L == khold:
            if thr: a("s_branch L_TH")
            else:
                a("L_KH:")
                a("ds_read_b32 v%d, v%d offset:%d" % (t2, vD, L_CNT1))
                a("s_waitcnt lgkmcnt(0)")
                a("v_cmp_gt_u32 vcc, 5, v%d" % t2)
                a("s_cbranch_vccnz L_KH")
        if L >= khold and thr: a("L_KF%d:" % L)
        kload(L)
    if thr: a("L_KF16:")
    stamp(1)
    a("s_setprio 1")
    a("s_mov_b32 s%d, 0x%x" % (V + 2, 64 << 20))
    a("s_mov_b32 s%d, 0x20000" % (V + 3))
    a("v_lshl_add_u32 v%d, v%d, 10, v%d" % (vB, vG, vE))
    for L in range(16):
        a("buffer_load_dwordx4 %s, v%d, %s, s%d offen offset:%d %s" % (vr(vV + 4 * L), vB, srd(V), sKV + L // 4, (L % 4) * 256, nt))
    stamp(4)
    if w2wait:
        a("v_mov_b32 v%d, 1" % t1)
        a("s_mov_b64 exec, 1")
        a("ds_add_u32 v%d, v%d offset:%d" % (vD, t1, L_CNT8))
        a("s_mov_b64 exec, -1")
    a("s_branch L_KV2")
    if thr:
        a("L_TH:")
        for L in range(khold, 16):
            a("L_TH%d:" % L)
            a("ds_read_b32 v%d, v%d offset:%d" % (t2, vD, L_CNT1))
            a("s_getreg_b32 s%d, hwreg(HW_REG_IB_STS, 0, 4)" % sT0) if False else None
            a("s_waitcnt vmcnt(%d) lgkmcnt(0)" % (khold - 1))
            a("v_cmp_gt_u32 vcc, 5, v%d" % t2)
            a("s_cbranch_vccz L_KF%d" % L)
            kload(L)
        a("s_branch L_KF16")
    a("L_AUX2:")
    a("s_mov_b32 s%d, 0x%x" % (W1 + 2, 640 * 3456))
    a("s_mov_b32 s%d, 0x20000" % (W1 + 3))
    a("s_and_b32 s%d, s2, 15" % sT3)
    a("s_mul_i32 s%d, s%d, 10" % (sT1, sT3))
    a("s_add_u32 s%d, s%d, s%d" % (sT3, sT1, sW))
    a("s_mul_i32 s%d, s%d, %d" % (sW1o, sT3, 4 * 3456))
    a("s_lshr_b32 s%d, s2, 4" % sT1)
    a("s_lshl_b32 s%d, s%d, 8" % (sT1, sT1))
    a("s_add_u32 s%d, s%d, s%d" % (sW1o, sW1o, sT1))
    a("s_cmp_ge_u32 s2, 224")
    a("s_cselect_b32 s%d, 0x%x, s%d" % (sW1o, OOB, sW1o))
    a("v_mul_u32_u24 v%d, 3456, v%d" % (vW1o, vG))
    a("v_add_u32 v%d, v%d, v%d" % (vW1o, vW1o, vE))
    if b0late: a("s_barrier")
    stamp(1)
    for (r, off) in ((B1, 56), (B2, 72), (OUT, 80)):
        a("s_load_dwordx2 s[%d:%d], s[0:1], %d" % (r, r + 1, off))
    for (r, n) in ((B1, 3456), (B2, 1280), (OUT, 1280)):
        a("s_movk_i32 s%d, %d" % (r + 2, n)); a("s_mov_b32 s%d, 0x20000" % (r + 3))
    a("s_mov_b32 s%d, 0x20000" % (W2 + 3))
    a("s_mul_i32 s%d, s%d, 80" % (sT0, sT2))
    a("v_lshl_add_u32 v%d, v%d, 2, s%d" % (vB, vG, sT0))
    a("s_lshl_b32 s%d, s%d, 4" % (sT0, sT3))
    a("v_lshl_add_u32 v%d, v%d, 2, s%d" % (vC, vG, sT0))
    a("s_sub_u32 s%d, s2, 160" % sT0)
    a("s_mul_i32 s%d, s%d, 205" % (sT1, sT0))
    a("s_lshr_b32 s%d, s%d, 10" % (sT1, sT1))
    a("s_mul_i32 s%d, s%d, 5" % (sT2, sT1))
    a("s_sub_u32 s%d, s%d, s%d" % (sT2, sT0, sT2))
    a("s_cmp_ge_u32 s2, 230")
    a("s_cselect_b32 s%d, 2, 1" % sROLE)
    a("s_cmp_lt_u32 s2, 160")
    a("s_cselect_b32 s%d, 0, s%d" % (sROLE, sROLE))
    a("s_cselect_b32 s%d, s%d, s%d" % (sRHO, sH, sT1))
    a("s_cselect_b32 s%d, s%d, s%d" % (sC, sSP, sT2))
    a("s_cselect_b32 s%d, 32, 64" % sT0)
    a("s_mov_b32 s%d, %d" % (W2 + 2, 1728 * 1280))
    a("s_cselect_b32 s%d, %d, s%d" % (W2 + 2, 4096 * 1280, W2 + 2))
    a("s_load_dwordx2 s[%d:%d], s[0:1], s%d" % (W2, W2 + 1, sT0))
    def masks():
        a("v_and_b32 v%d, 1, v%d" % (t3, vNN))
        a("v_lshlrev_b32 v%d, 4, v%d" % (t3, t3))
        a("v_mov_b32 v%d, 0xffff" % (vT + 4))
        a("v_lshlrev_b32 v%d, v%d, v%d" % (t3, t3, vT + 4))
        a("v_lshrrev_b32 v%d, 1, v%d" % (vT + 4, vNN))
        for r in range(4):
            a("v_cmp_eq_u32 s[%d:%d], %d, v%d" % (sM + 2 * r, sM + 2 * r + 1, r, vT + 4))
        a("v_lshlrev_b32 v%d, 3, v%d" % (vL8, vLANE))
        a("s_and_b32 s%d, s%d, 3" % (sT1, sW))
        a("s_lshl_b32 s%d, s%d, 9" % (sT1, sT1))
        a("v_lshl_add_u32 v%d, v%d, 4, s%d" % (vPW, vG, sT1))
        a("v_lshl_add_u32 v%d, v%d, 5, v%d" % (vPW, vNN, vPW))
        for r in range(4):
            a("v_cndmask_b32 v%d, 0, v%d, s[%d:%d]" % (vM + r, t3, sM + 2 * r, sM + 2 * r + 1))
    masks()
    vF = vR
    a("s_waitcnt vmcnt(6)")
    stamp(2)
    for k in range(5):
        a("v_lshlrev_b32 v%d, 16, v%d" % (vF + 2 * k, vXS + k))
        a("v_and_b32 v%d, 0xffff0000, v%d" % (vF + 2 * k + 1, vXS + k))
    a("v_pk_add_f32 %s, %s, %s" % (vr(t0, 2), vr(vF, 2), vr(vF + 2, 2)))
    a("v_pk_add_f32 %s, %s, %s" % (vr(t2, 2), vr(vF + 4, 2), vr(vF + 6, 2)))
    a("v_pk_add_f32 %s, %s, %s" % (vr(t0, 2), vr(t0, 2), vr(vF + 8, 2)))
    a("v_pk_add_f32 %s, %s, %s" % (vr(t0, 2), vr(t0, 2), vr(t2, 2)))
    a("v_add_f32 v%d, v%d, v%d" % (t0, t0, t1))
    def wave_sum(v, sdst):
        for ctl in ("row_ror:8", "row_ror:4", "row_ror:2", "row_ror:1", "row_bcast:15 row_mask:0xa", "row_bcast:31 row_mask:0xc"):
            a("s_nop 1")
            rm = "" if "row_mask" in ctl else " row_mask:0xf"
            a("v_add_f32_dpp v%d, v%d, v%d %s%s bank_mask:0xf" % (v, v, v, ctl, rm))
        a("s_nop 0")
        a("v_readlane_b32 s%d, v%d, 63" % (sdst, v))
    wave_sum(t0, sT1)
    a("v_mov_b32 v%d, %s" % (t1, f32(1.0 / 640)))
    a("s_nop 0")
    a("v_mul_f32 v%d, s%d, v%d" % (t0, sT1, t1))
    vMEAN = vT + 4
    a("v_cvt_pk_bf16_f32 v%d, v%d, v%d" % (vMEAN, t0, t0))
    a("v_and_b32 v%d, 0xffff0000, v%d" % (vMEAN, vMEAN))
    for k in range(10):
        a("v_sub_f32 v%d, v%d, v%d" % (t2 + (k & 1), vF + k, t0))
        if k < 2:
            a("v_mul_f32 v%d, v%d, v%d" % (vT + 6 + (k & 1), t2 + (k & 1), t2 + (k & 1)))
        else:
            a("v_fmac_f32 v%d, v%d, v%d" % (vT + 6 + (k & 1), t2 + (k & 1), t2 + (k & 1)))
    a("v_add_f32 v%d, v%d, v%d" % (t0, vT + 6, vT + 7))
    wave_sum(t0, sT1)
    for k in range(10):
        a("v_sub_f32 v%d, v%d, v%d" % (vF + k, vF + k, vMEAN))
    a("v_mul_f32 v%d, s%d, v%d" % (t0, sT1, t1))
    a("v_cvt_pk_bf16_f32 v%d, v%d, v%d" % (t0, t0, t0))
    a("v_and_b32 v%d, 0xffff0000, v%d" % (t0, t0))
    a("v_add_f32 v%d, %s, v%d" % (t0, f32(1e-5), t0))
    a("v_cvt_pk_bf16_f32 v%d, v%d, v%d" % (t0, t0, t0))
    a("v_and_b32 v%d, 0xffff0000, v%d" % (t0, t0))
    a("v_sqrt_f32 v%d, v%d" % (t0, t0))
    for k in range(5):
        a("v_cvt_pk_bf16_f32 v%d, v%d, v%d" % (vXS + k, vF + 2 * k, vF + 2 * k + 1))
    a("v_cvt_pk_bf16_f32 v%d, v%d, v%d" % (t0, t0, t0))
    a("v_and_b32 v%d, 0xffff0000, v%d" % (t0, t0))
    a("v_rcp_f32 v%d, v%d" % (t0, t0))
    for k in range(5):
        a("v_lshlrev_b32 v%d, 16, v%d" % (vF + 2 * k, vXS + k))
        a("v_and_b32 v%d, 0xffff0000, v%d" % (vF + 2 * k + 1, vXS + k))
    for k in range(10):
        a("v_mul_f32 v%d, v%d, v%d" % (vF + k, vF + k, t0))
    for k in range(10):
        a("v_cvt_pk_bf16_f32 v%d, v%d, v%d" % (vF + k, vF + k, vF + k))
    a("v_lshlrev_b32 v%d, 5, v%d" % (t0, vLANE))
    a("ds_write_b128 v%d, %s" % (t0, vr(vF)))
    a("ds_write_b128 v%d, %s offset:16" % (t0, vr(vF + 4)))
    a("ds_write_b64 v%d, %s offset:2048" % (vL8, vr(vF + 8, 2)))
    stamp(3)
    for i in range(5):
        a("ds_read_b32 v%d, v%d offset:%d" % (vXN + i, vB, 16 * i))
    a("ds_read_b32 v%d, v%d" % (vXN + 5, vC))
    a("ds_read_b32 v%d, v%d offset:64" % (vXN + 6, vC))
    a("ds_read_b32 v%d, v%d offset:%d" % (vXN + 7, vC, 128))
    vGA, vGB, vFA = vA, vB, vC
    a("v_and_b32 v%d, 1, v%d" % (t3, vG))
    a("v_lshlrev_b32 v%d, 3, v%d" % (t3, t3))
    a("v_lshrrev_b32 v%d, 1, v%d" % (t2, vG))
    a("v_add_u32 v%d, v%d, v%d" % (t3, t3, t2))
    a("v_mul_u32_u24 v%d, 1280, v%d" % (vD, t3))
    a("v_add_u32 v%d, v%d, v%d" % (vD, vD, vE))
    a("s_lshl_b32 s%d, s%d, 2" % (sT0, sRHO))
    a("s_add_u32 s%d, s%d, s%d" % (sT0, sT0, sW))
    a("s_mul_i32 s%d, s%d, %d" % (sW2o, sT0, 32 * 1280))
    a("s_lshl_b32 s%d, s%d, 8" % (sT0, sC))
    a("s_add_u32 s%d, s%d, s%d" % (sW2o, sW2o, sT0))
    a("s_waitcnt lgkmcnt(0)")
    for i in range(5):
        for r in range(4):
            a("v_and_b32 v%d, v%d, v%d" % (vPA2 + 4 * i + r, vM + r, vXN + i))
    a("s_waitcnt vmcnt(4)")
    a("v_readfirstlane_b32 s%d, v%d" % (sTAG, vEP))
    def mfma_seq(seq):
        def build(idx):
            A = vA0 if idx % 2 == 0 else vA1
            for r in range(4):
                a("v_and_b32 v%d, v%d, v%d" % (A + r, vM + r, seq[idx][0]))
        build(0)
        for idx in range(len(seq)):
            if idx + 1 < len(seq): build(idx + 1)
            else: a("s_nop 1")
            A = vA0 if idx % 2 == 0 else vA1
            _, B, acc, first = seq[idx]
            a("v_mfma_f32_16x16x32_bf16 %s, %s, %s, %s" % (vr(acc), vr(A), vr(B), "0" if first else vr(acc)))
    for i in range(5):
        if i: a("s_waitcnt vmcnt(%d)" % (4 - i))
        a("v_mfma_f32_16x16x32_bf16 %s, %s, %s, %s" % (vr(vAQ), vr(vPA2 + 4 * i), vr(vWQ + 4 * i), "0" if i == 0 else vr(vAQ)))
    stamp(4)
    a("s_add_u32 s%d, s%d, 1" % (sTAG, sTAG))
    a("s_getreg_b32 s%d, hwreg(HW_REG_XCC_ID, 0, 4)" % sTAGA)
    a("s_add_u32 s%d, s%d, 1" % (sTAGA, sTAGA))
    a("s_lshl_b32 s%d, s%d, 27" % (sTAGA, sTAGA))
    a("s_xor_b32 s%d, s%d, s%d" % (sTAGA, sTAGA, sTAG))
    a("v_lshrrev_b32 v%d, 3, v%d" % (vGB, vLANE))
    a("v_and_b32 v%d, 7, v%d" % (t3, vLANE))
    a("s_lshl_b32 s%d, s%d, 8" % (sT0, sW))
    a("v_lshl_add_u32 v%d, v%d, 4, s%d" % (vGA, t3, sT0))
    a("v_mov_b32 v%d, 0" % (vT + 9))
    a("v_mov_b32 v%d, 1" % (vT + 10))
    a("s_mov_b32 exec_hi, 0")
    a("ds_write_b128 v%d, %s offset:%d" % (vPW, vr(vAQ), U_QP * 512))
    a("s_mov_b64 exec, 1")
    a("ds_add_rtn_u32 v%d, v%d, v%d offset:%d" % (t2, vT + 9, vT + 10, L_CNT1))
    a("s_mov_b64 exec, -1")
    a("v_lshl_add_u32 v%d, v%d, 10, v%d" % (vGA, vGB, vGA))
    a("v_lshlrev_b32 v%d, 7, v%d" % (vGB, vGB))
    a("v_mov_b32 v%d, s%d" % (vR + 9, sTAGA))
    a("v_mov_b32 v%d, s%d" % (vR + 11, sTAGA))
    a("s_lshl_b32 s%d, s%d, 13" % (sGQ, sH))
    a("s_lshl_b32 s%d, s%d, 10" % (sT1, sSP))
    a("s_add_u32 s%d, s%d, s%d" % (sT1, sT1, sGQ))
    a("s_add_u32 s%d, s%d, 0x%x" % (sQ, sT1, WS_Q))
    a("s_add_u32 s%d, s%d, 0x%x" % (sT2, sQ, WS_ALT))
    a("s_lshl_b32 s%d, s%d, 11" % (sT0, sW))
    a("s_add_u32 s%d, s%d, s%d" % (sGQ, sGQ, sT0))
    a("s_add_u32 s%d, s%d, 0x%x" % (sGQ, sGQ, WS_Q + WS_ALT))
    a("s_mov_b32 s%d, 0x%x" % (sSPIN, SPIN))
    def reduce4(unit, dst):
        for k in range(2):
            a("ds_read2st64_b64 %s, v%d offset0:%d offset1:%d" % (vr(dst + 4 * k), vL8, unit + 2 * k, unit + 2 * k + 1))
        a("s_waitcnt lgkmcnt(1)")
        a("v_pk_add_f32 %s, %s, %s" % (vr(dst, 2), vr(dst, 2), vr(dst + 2, 2)))
        a("s_waitcnt lgkmcnt(0)")
        a("v_pk_add_f32 %s, %s, %s" % (vr(dst + 4, 2), vr(dst + 4, 2), vr(dst + 6, 2)))
        a("v_add_f32 v%d, v%d, v%d" % (dst + 8, dst, dst + 4))
        a("v_add_f32 v%d, v%d, v%d" % (dst + 10, dst + 1, dst + 5))
    a("s_waitcnt lgkmcnt(0)")
    a("v_readfirstlane_b32 s%d, v%d" % (sT0, t2))
    a("s_nop 0")
    a("s_cmp_lg_u32 s%d, 3" % sT0)
    a("s_cbranch_scc1 %s" % ("L_WP" if waitpub else "L_QP"))
    reduce4(U_QP, vR)
    a("buffer_store_dwordx4 %s, v%d, %s, s%d offen" % (vr(vR + 8), vL16, srd(WS), sT2))
    if ackpub: a("s_waitcnt vmcnt(0)")
    if waitpub:
        a("s_mov_b64 exec, 1")
        a("ds_add_u32 v%d, v%d offset:%d" % (vT + 9, vT + 10, L_CNT1))
        a("s_mov_b64 exec, -1")
    stamp(5)
    if waitpub:
        a("s_branch L_QP")
        a("L_WP:")
        a("ds_read_b32 v%d, v%d offset:%d" % (t2, vT + 9, L_CNT1))
        a("s_waitcnt lgkmcnt(0)")
        a("v_cmp_gt_u32 vcc, 5, v%d" % t2)
        a("s_cbranch_vccnz L_WP")
    a("L_QP:")
    def qloads(r0, r1):
        a("buffer_load_dwordx4 %s, v%d, %s, s%d offen %s" % (vr(r0), vL16, srd(WS), sGQ, ld))
        a("buffer_load_dwordx4 %s, v%d, %s, s%d offen offset:1024 %s" % (vr(r1), vL16, srd(WS), sGQ, ld))
    qloads(vQ0, vQ1)
    a("buffer_load_dwordx4 %s, v%d, %s, s%d offen %s" % (vr(vW1), vW1o, srd(W1), sW1o, nt))
    a("s_add_u32 s%d, s%d, %d" % (sW1o, sW1o, 16 * 3456))
    a("buffer_load_dwordx4 %s, v%d, %s, s%d offen %s" % (vr(vW1 + 4), vW1o, srd(W1), sW1o, nt))
    a("s_add_u32 s%d, s%d, %d" % (sW1o, sW1o, 16 * 3456))
    a("s_cmp_ge_u32 s%d, 2" % sW)
    a("s_cselect_b32 s%d, 0x%x, s%d" % (sW1o, OOB, sW1o))
    a("buffer_load_dwordx4 %s, v%d, %s, s%d offen %s" % (vr(vW1 + 8), vW1o, srd(W1), sW1o, nt))
    a("v_mov_b32 v%d, 0" % vQ3)
    a("v_lshrrev_b32 v%d, 2, v%d" % (vFA, vLANE))
    a("v_mul_u32_u24 v%d, 3072, v%d" % (vFA, vFA))
    a("v_and_b32 v%d, 3, v%d" % (t3, vLANE))
    a("v_lshl_add_u32 v%d, v%d, 4, v%d" % (vFA, t3, vFA))
    a("s_mul_i32 s%d, s%d, %d" % (sFO, sC, 16 * 3072))
    a("s_lshl_b32 s%d, s%d, 6" % (sT1, sRHO))
    a("s_add_u32 s%d, s%d, s%d" % (sFO, sFO, sT1))
    a("s_add_u32 s%d, s%d, 0x%x" % (sFO, sFO, WS_F))
    a("s_lshl_b32 s%d, s%d, 13" % (sGO, sH))
    a("s_add_u32 s%d, s%d, 0x%x" % (sGO, sGO, WS_O + WS_ALT))
    a("s_lshl_b32 s%d, s%d, 10" % (sGM, sH))
    a("s_add_u32 s%d, s%d, 0x%x" % (sGM, sGM, WS_ML + WS_ALT))
    a("s_mov_b32 s%d, %d" % (sDRY, 1 if dry else 0))
    a("s_cmp_eq_u32 s%d, 0" % sROLE)
    a("s_cbranch_scc1 %s" % ("L_DRY0" if dry else "L_C0"))
    a("v_lshrrev_b32 v%d, 5, v%d" % (vT + 5, vLANE))
    a("s_cmp_eq_u32 s%d, 1" % sROLE)
    a("s_cbranch_scc0 L_C2")
    a("v_and_b32 v%d, 7, v%d" % (vT + 6, vLANE))
    a("v_lshl_add_u32 v%d, v%d, 1, v%d" % (vT + 5, vT + 6, vT + 5))
    a("s_lshl_b32 s%d, s%d, 7" % (sT0, sRHO))
    a("s_lshl_b32 s%d, s%d, 5" % (sT1, sW))
    a("s_add_u32 s%d, s%d, s%d" % (sT0, sT0, sT1))
    a("v_add_lshl_u32 v%d, v%d, s%d, 1" % (vQ3, vT + 5, sT0))
    a("s_lshl_b32 s%d, s%d, 14" % (sGO, sRHO))
    a("s_add_u32 s%d, s%d, 0x%x" % (sGO, sGO, WS_H))
    a("s_add_u32 s%d, s%d, 0x2000" % (sGM, sGO))
    a("s_add_u32 s%d, s%d, %d" % (sFO, sFO, 32 * 64))
    a("s_branch %s" % ("L_DRY1" if dry else "L_C0"))
    a("L_C2:")
    a("s_sub_u32 s%d, s2, 230" % sF)
    a("s_lshl_b32 s%d, s%d, 2" % (sF, sF))
    a("s_add_u32 s%d, s%d, s%d" % (sF, sF, sW))
    a("v_and_b32 v%d, 3, v%d" % (vT + 6, vLANE))
    a("v_lshl_add_u32 v%d, v%d, 1, v%d" % (vT + 5, vT + 6, vT + 5))
    a("s_lshl_b32 s%d, s%d, 3" % (sT0, sF))
    a("v_add_lshl_u32 v%d, v%d, s%d, 1" % (vD, vT + 5, sT0))
    a("s_mul_i32 s%d, s%d, 3072" % (sGO, sF))
    a("s_add_u32 s%d, s%d, 0x%x" % (sGO, sGO, WS_F))
    if dry: a("s_branch L_DRY2")
    else: a("s_branch L_C0")
    def tagcheck(bufs, tg=None):
        tg = sTAG if tg is None else tg
        tmps = []
        n = 0
        for b in bufs:
            for o in (1, 3):
                a("v_xor_b32 v%d, s%d, v%d" % (vT + n, tg, b + o)); tmps.append(vT + n); n += 1
        while len(tmps) > 1:
            if len(tmps) >= 3:
                a("v_or3_b32 v%d, v%d, v%d, v%d" % (tmps[0], tmps[0], tmps[1], tmps[2])); tmps = tmps[3:] + [tmps[0]]
            else:
                a("v_or_b32 v%d, v%d, v%d" % (tmps[0], tmps[0], tmps[1])); tmps = [tmps[0]]
        a("v_cmp_ne_u32 vcc, 0, v%d" % tmps[0])
    def spin():
        a("s_sub_u32 s%d, s%d, 1" % (sSPIN, sSPIN))
        a("s_cbranch_scc1 L_EXIT")
    a("L_QR:")
    spin()
    a("s_cmp_lg_u32 s%d, 0x%x" % (sSPIN, SPIN - nAq))
    a("s_cbranch_scc1 L_QR2")
    a("s_sub_u32 s%d, s%d, 0x%x" % (sGQ, sGQ, WS_ALT))
    a("s_mov_b32 s%d, s%d" % (sTAGA, sTAG))
    a("v_mov_b32 v%d, s%d" % (vR + 9, sTAG))
    a("v_mov_b32 v%d, s%d" % (vR + 11, sTAG))
    a("v_mov_b32 v%d, 0" % (vT + 9))
    a("v_mov_b32 v%d, 1" % (vT + 10))
    a("ds_write_b32 v%d, v%d offset:%d" % (vT + 9, vT + 10, L_USEB))
    reduce4(U_QP, vR)
    a("buffer_store_dwordx4 %s, v%d, %s, s%d offen %s" % (vr(vR + 8), vL16, srd(WS), sQ, st))
    a("L_QR2:")
    qloads(vQ0, vQ1)
    a("s_waitcnt vmcnt(0)")
    a("L_C0:")
    a("s_mov_b32 s%d, 0" % sDRY)
    a("s_waitcnt vmcnt(3)")
    tagcheck([vQ0, vQ1], sTAGA)
    a("s_cbranch_vccnz L_QR")
    if stamps:
        a("s_sub_u32 s100, 0x%x, s%d" % (SPIN, sSPIN))
    a("v_add_f32 v%d, v%d, v%d" % (vQ0, vQ0, vQ1))
    a("v_add_f32 v%d, v%d, v%d" % (vQ0 + 1, vQ0 + 2, vQ1 + 2))
    a("s_lshl_b32 s%d, s%d, 9" % (sT1, sW))
    a("v_add_u32 v%d, s%d, v%d" % (t0, sT1, vL8))
    a("v_mov_b32 v%d, 0" % (vT + 9))
    a("v_mov_b32 v%d, 1" % (vT + 10))
    a("ds_write_b64 v%d, %s offset:%d" % (t0, vr(vQ0, 2), U_Q2 * 512))
    a("s_mov_b64 exec, 1")
    a("ds_add_rtn_u32 v%d, v%d, v%d offset:%d" % (t2, vT + 9, vT + 10, L_CNT3))
    a("s_mov_b64 exec, -1")
    a("s_mov_b32 s%d, 0x%x" % (sSPIN, SPIN))
    a("s_waitcnt lgkmcnt(0)")
    a("v_readfirstlane_b32 s%d, v%d" % (sT1, t2))
    a("s_nop 0")
    a("s_cmp_lg_u32 s%d, 3" % sT1)
    a("s_cbranch_scc1 L_QD")
    reduce4(U_Q2, vR)
    a("v_cvt_pk_bf16_f32 v%d, v%d, v%d" % (vR, vR + 8, vR + 10))
    a("v_lshlrev_b32 v%d, 2, v%d" % (t0, vLANE))
    a("ds_write_b32 v%d, v%d offset:%d" % (t0, vR, L_QB))
    a("ds_read_b32 v%d, v%d offset:%d" % (t1, vT + 9, L_USEB))
    a("v_mov_b32 v%d, s%d" % (t2, sTAGA))
    a("v_mov_b32 v%d, s%d" % (t3, sTAG))
    a("s_waitcnt lgkmcnt(0)")
    a("v_cmp_ne_u32 vcc, 0, v%d" % t1)
    a("s_nop 1")
    a("v_cndmask_b32 v%d, v%d, v%d, vcc" % (t2, t2, t3))
    a("ds_write_b32 v%d, v%d offset:%d" % (vT + 9, t2, L_TAG))
    a("ds_write_b32 v%d, v%d offset:%d" % (vT + 9, vT + 10, L_QRDY))
    a("L_QD:")
    a("v_mov_b32 v%d, s%d" % (vR + 9, sTAG))
    a("v_mov_b32 v%d, s%d" % (vR + 11, sTAG))
    stamp(8)
    a("s_cmp_eq_u32 s%d, 0" % sROLE)
    a("s_cbranch_scc1 L_RC0")
    a("s_cmp_eq_u32 s%d, 1" % sROLE)
    a("s_cbranch_scc0 L_RC2")
    a("buffer_load_short_d16_hi v%d, v%d, %s, 0 offen" % (vCONST, vQ3, srd(B1)))
    a("buffer_load_short_d16_hi v%d, v%d, %s, 0 offen offset:32" % (vEP, vQ3, srd(B1)))
    a("s_waitcnt vmcnt(2)")
    a("s_branch L_RC1")
    a("L_RC2:")
    a("buffer_load_ushort v%d, v%d, %s, 0 offen" % (vPF + 1, vD, srd(OUT)))
    a("s_mov_b32 exec_lo, 0x0000ffff")
    a("s_mov_b32 exec_hi, 0x0000ffff")
    a("buffer_load_short_d16_hi v%d, v%d, %s, 0 offen" % (vCONST, vD, srd(X)))
    a("s_not_b64 exec, exec")
    a("buffer_load_short_d16_hi v%d, v%d, %s, 0 offen" % (vCONST, vD, srd(B2)))
    a("s_mov_b64 exec, -1")
    a("s_waitcnt vmcnt(3)")
    a("s_branch L_RC1")
    a("L_RC0:")
    a("s_waitcnt vmcnt(0)")
    a("L_RC1:")
    a("s_cmp_ge_u32 s%d, 2" % sW)
    a("s_cbranch_scc0 L_XOK")
    a("v_mov_b32 v%d, 0" % (vXN + 7))
    a("L_XOK:")
    mfma_seq([(vXN + 5 + j, vW1 + 4 * j, vAH, j == 0) for j in range(3)])
    a("s_mov_b32 exec_hi, 0")
    a("s_nop 6")
    a("ds_write_b128 v%d, %s offset:%d" % (vPW, vr(vAH), U_HP * 512))
    a("s_mov_b64 exec, 1")
    a("ds_add_rtn_u32 v%d, v%d, v%d offset:%d" % (t2, vT + 9, vT + 10, L_CNT4))
    a("s_mov_b64 exec, -1")
    a("s_waitcnt lgkmcnt(0)")
    a("v_readfirstlane_b32 s%d, v%d" % (sT1, t2))
    a("s_nop 0")
    a("s_cmp_lg_u32 s%d, 3" % sT1)
    a("s_cbranch_scc1 L_HD")
    a("s_cmp_ge_u32 s2, 224")
    a("s_cbranch_scc1 L_HD")
    reduce4(U_HP, vR)
    a("s_lshl_b32 s%d, s2, 10" % sT0)
    a("s_add_u32 s%d, s%d, 0x%x" % (sT0, sT0, WS_H))
    a("buffer_store_dwordx4 %s, v%d, %s, s%d offen %s" % (vr(vR + 8), vL16, srd(WS), sT0, st))
    a("L_HD:")
    a("s_setprio 0")
    stamp(6)
    def HGATHER():
        a("buffer_load_dwordx4 %s, v%d, %s, s%d offen %s" % (vr(vP0), vGA, srd(WS), sGO, ld))
        a("buffer_load_dwordx4 %s, v%d, %s, s%d offen offset:128 %s" % (vr(vP1), vGA, srd(WS), sGO, ld))
        a("buffer_load_dwordx4 %s, v%d, %s, s%d offen %s" % (vr(vP2), vGA, srd(WS), sGM, ld))
        a("buffer_load_dwordx4 %s, v%d, %s, s%d offen offset:128 %s" % (vr(vP3), vGA, srd(WS), sGM, ld))
    def w2_loads():
        for u in range(2):
            for i in range(4):
                if (u, i) in ((0, 2), (1, 2)): a("s_add_u32 s%d, s%d, 5120" % (sW2o, sW2o))
                if (u, i) == (1, 0): a("s_add_u32 s%d, s%d, %d" % (sW2o, sW2o, 20480 - 5120))
                a("buffer_load_dwordx4 %s, v%d, %s, s%d offen offset:%d %s" % (vr(vW2 + 16 * u + 4 * i), vD, srd(W2), sW2o, (i % 2) * 2560, nt))
    a("s_cmp_eq_u32 s%d, 2" % sROLE)
    a("s_cbranch_scc1 L_FINB")
    if w2wait:
        a("L_W2W:")
        a("ds_read_b32 v%d, v%d offset:%d" % (t2, vT + 9, L_CNT8))
        a("s_waitcnt lgkmcnt(0)")
        a("v_cmp_gt_u32 vcc, %d, v%d" % (w2wait, t2))
        a("s_cbranch_vccnz L_W2W")
    w2_loads()
    stamp(7)
    a("L_UW:")
    a("ds_read_b32 v%d, v%d offset:%d" % (t2, vT + 9, L_CNT6 if dwait else L_QRDY))
    a("ds_read_b32 v%d, v%d offset:%d" % (t3, vT + 9, L_USEB))
    a("s_waitcnt lgkmcnt(0)")
    a("v_cmp_gt_u32 vcc, %d, v%d" % (4 if dwait else 1, t2))
    a("s_cbranch_vccnz L_UW")
    a("v_readfirstlane_b32 s%d, v%d" % (sT0, t3))
    a("s_nop 0")
    a("s_cmp_eq_u32 s%d, 0" % sT0)
    a("s_cbranch_scc1 L_UD")
    a("s_mov_b32 s%d, s%d" % (sTAGA, sTAG))
    a("s_cmp_lg_u32 s%d, 0" % sROLE)
    a("s_cbranch_scc1 L_UD")
    a("s_sub_u32 s%d, s%d, 0x%x" % (sGO, sGO, WS_ALT))
    a("s_sub_u32 s%d, s%d, 0x%x" % (sGM, sGM, WS_ALT))
    a("L_UD:")
    if stamps:
        a("s_cmp_lg_u32 s%d, 3" % sW)
        a("s_cbranch_scc1 L_NOW2S")
        a("s_waitcnt vmcnt(0)")
        stamp(9)
        a("L_NOW2S:")
    a("s_cmp_eq_u32 s%d, 1" % sROLE)
    a("s_cbranch_scc1 L_POLL1")
    def altswitch():
        a("s_cmp_eq_u32 s%d, 0x%x" % (sSPIN, SPIN - nA))
        a("s_cselect_b32 s%d, 0x%x, 0" % (sT0, WS_ALT))
        a("s_sub_u32 s%d, s%d, s%d" % (sGO, sGO, sT0))
        a("s_sub_u32 s%d, s%d, s%d" % (sGM, sGM, sT0))
    def oloads():
        a("buffer_load_dwordx4 %s, v%d, %s, s%d offen %s" % (vr(vP0), vGA, srd(WS), sGO, ld))
        a("buffer_load_dwordx4 %s, v%d, %s, s%d offen offset:128 %s" % (vr(vP1), vGA, srd(WS), sGO, ld))
    a("L_MR:")
    spin()
    a("buffer_load_dwordx4 %s, v%d, %s, s%d offen %s" % (vr(vP2), vGB, srd(WS), sGM, ld))
    oloads()
    a("s_waitcnt vmcnt(2)")
    stamp(10)
    tagcheck([vP2], sTAGA)
    a("s_cbranch_vccnz L_MR")
    a("L_DRY0:")
    def allred(v, tmp, op):
        a("s_nop 1")
        a("v_%s_f32_dpp v%d, v%d, v%d row_ror:8 %s" % (op, v, v, v, DPP))
        for sw in ("16", "32"):
            a("v_mov_b32 v%d, v%d" % (tmp, v))
            a("s_nop 1")
            a("v_permlane%s_swap_b32 v%d, v%d" % (sw, v, tmp))
            a("v_%s_f32 v%d, v%d, v%d" % (op, v, v, tmp))
    a("v_mov_b32 v%d, v%d" % (t0, vP2))
    allred(t0, t1, "max")
    a("v_sub_f32 v%d, v%d, v%d" % (t0, vP2, t0))
    a("v_mul_f32 v%d, %s, v%d" % (t0, f32(LOG2E), t0))
    a("v_exp_f32 v%d, v%d" % (vFAC, t0))
    a("s_nop 0")
    a("v_mul_f32 v%d, v%d, v%d" % (t2, vFAC, vP2 + 2))
    allred(t2, t1, "add")
    a("v_rcp_f32 v%d, v%d" % (t2, t2))
    a("s_cmp_eq_u32 s%d, 1" % sDRY)
    a("v_mul_f32 v%d, v%d, v%d" % (vFAC, vFAC, t2))
    a("s_cbranch_scc1 L_OK0")
    a("s_branch L_OC")
    a("L_OR:")
    spin()
    oloads()
    a("L_OC:")
    a("s_waitcnt vmcnt(0)")
    tagcheck([vP0, vP1], sTAGA)
    a("s_cbranch_vccnz L_OR")
    stamp(11)
    a("L_OK0:")
    for b in (vP0, vP1):
        a("v_mul_f32 v%d, v%d, v%d" % (b, b, vFAC))
        a("v_mul_f32 v%d, v%d, v%d" % (b + 2, b + 2, vFAC))
    def tred2():
        a("s_nop 0")
        a("v_permlane32_swap_b32 v%d, v%d" % (vP0, vP0 + 2))
        a("v_permlane32_swap_b32 v%d, v%d" % (vP1, vP1 + 2))
        a("v_add_f32 v%d, v%d, v%d" % (vP0, vP0, vP0 + 2))
        a("v_add_f32 v%d, v%d, v%d" % (vP1, vP1, vP1 + 2))
        a("v_mov_b32 v%d, v%d" % (vP0 + 2, vP0))
        a("v_mov_b32 v%d, v%d" % (vP1 + 2, vP1))
        a("s_nop 0")
        a("v_permlane16_swap_b32 v%d, v%d" % (vP0, vP0 + 2))
        a("v_permlane16_swap_b32 v%d, v%d" % (vP1, vP1 + 2))
        a("v_add_f32 v%d, v%d, v%d" % (vP0, vP0, vP0 + 2))
        a("v_add_f32 v%d, v%d, v%d" % (vP1, vP1, vP1 + 2))
        a("s_nop 0")
        a("v_add_f32_dpp v%d, v%d, v%d row_ror:8 %s" % (vP0, vP0, vP0, DPP))
        a("v_add_f32_dpp v%d, v%d, v%d row_ror:8 %s" % (vP1, vP1, vP1, DPP))
    tred2()
    a("L_GEMV2:")
    a("v_cvt_pk_bf16_f32 v%d, v%d, v%d" % (vP0, vP0, vP0))
    a("v_cvt_pk_bf16_f32 v%d, v%d, v%d" % (vP1, vP1, vP1))
    a("s_nop 0")
    a("v_mov_b32_dpp v%d, v%d row_ror:4 row_mask:0xa bank_mask:0xf" % (vP0, vP0))
    a("v_mov_b32_dpp v%d, v%d row_ror:4 row_mask:0xa bank_mask:0xf" % (vP1, vP1))
    a("s_nop 0")
    for k in range(8):
        for r in range(4):
            a("v_and_b32_dpp v%d, v%d, v%d row_newbcast:%d %s" % (vPA2 + 4 * k + r, vP0 if k < 4 else vP1, vM + r, k % 4, DPP))
        if k >= 1:
            a("v_mfma_f32_16x16x32_bf16 %s, %s, %s, %s" % (vr(vAQ), vr(vPA2 + 4 * (k - 1)), vr(vW2 + 4 * (k - 1)), "0" if k == 1 else vr(vAQ)))
    a("s_cmp_eq_u32 s%d, 1" % sDRY)
    a("s_nop 0")
    a("v_mfma_f32_16x16x32_bf16 %s, %s, %s, %s" % (vr(vAQ), vr(vPA2 + 28), vr(vW2 + 28), vr(vAQ)))
    a("s_mov_b32 exec_hi, 0")
    a("s_nop 6")
    a("ds_write_b128 v%d, %s offset:%d" % (vPW, vr(vAQ), U_FP * 512))
    a("s_cbranch_scc1 L_DRYP")
    a("s_mov_b64 exec, 1")
    a("ds_add_rtn_u32 v%d, v%d, v%d offset:%d" % (t2, vT + 9, vT + 10, L_CNT7))
    a("s_waitcnt lgkmcnt(0)")
    a("v_cmp_ne_u32 vcc, 3, v%d" % t2)
    stamp(12)
    a("s_cbranch_vccnz L_EXIT")
    a("L_DRYP:")
    a("s_mov_b64 exec, -1")
    reduce4(U_FP, vR)
    a("s_cmp_eq_u32 s%d, 1" % sDRY)
    a("s_cbranch_scc1 L_C0")
    a("buffer_store_dwordx4 %s, v%d, %s, s%d offen %s" % (vr(vR + 8), vFA, srd(WS), sFO, st))
    a("s_branch L_EXIT")
    a("L_POLL1:")
    spin()
    HGATHER()
    a("s_waitcnt vmcnt(0)")
    tagcheck([vP0, vP1, vP2, vP3])
    a("s_cbranch_vccnz L_POLL1")
    stamp(11)
    a("L_DRY1:")
    a("v_add_f32 v%d, v%d, v%d" % (vP0, vP0, vP2))
    a("v_add_f32 v%d, v%d, v%d" % (vP0 + 2, vP0 + 2, vP2 + 2))
    a("v_add_f32 v%d, v%d, v%d" % (vP1, vP1, vP3))
    a("v_add_f32 v%d, v%d, v%d" % (vP1 + 2, vP1 + 2, vP3 + 2))
    tred2()
    k0 = -2.0 * 0.7978845608028654 * LOG2E
    for (b, cst, ta, tb) in ((vP0, vCONST, t0, t1), (vP1, vEP, t2, t3)):
        a("v_cvt_pk_bf16_f32 v%d, v%d, v%d" % (b, b, b))
        a("v_and_b32 v%d, 0xffff0000, v%d" % (b, b))
        a("v_and_b32 v%d, 0xffff0000, v%d" % (ta, cst))
        a("v_add_f32 v%d, v%d, v%d" % (b, b, ta))
        a("v_cvt_pk_bf16_f32 v%d, v%d, v%d" % (b, b, b))
        a("v_and_b32 v%d, 0xffff0000, v%d" % (b, b))
        a("v_mul_f32 v%d, v%d, v%d" % (ta, b, b))
        a("v_mov_b32 v%d, %s" % (tb, f32(k0)))
        a("v_fmac_f32 v%d, %s, v%d" % (tb, f32(k0 * 0.044715), ta))
        a("v_mul_f32 v%d, v%d, v%d" % (ta, tb, b))
        a("v_exp_f32 v%d, v%d" % (ta, ta))
        a("s_nop 0")
        a("v_add_f32 v%d, 1.0, v%d" % (ta, ta))
        a("v_rcp_f32 v%d, v%d" % (ta, ta))
        a("s_nop 0")
        a("v_mul_f32 v%d, v%d, v%d" % (b, b, ta))
    a("s_lshl_b32 s%d, s%d, 2" % (sT0, sRHO))
    a("s_add_u32 s%d, s%d, s%d" % (sT0, sT0, sW))
    a("s_cmp_lt_u32 s%d, 54" % sT0)
    a("s_cbranch_scc1 L_GEMV2")
    a("v_mov_b32 v%d, 0" % vP0)
    a("v_mov_b32 v%d, 0" % vP1)
    a("s_branch L_GEMV2")
    a("L_FINB:")
    if fwait:
        a("L_FW:")
        a("ds_read_b32 v%d, v%d offset:%d" % (t2, vT + 9, L_CNT6))
        a("s_waitcnt lgkmcnt(0)")
        a("v_cmp_gt_u32 vcc, 4, v%d" % t2)
        a("s_cbranch_vccnz L_FW")
    a("s_cmp_ge_u32 s%d, 80" % sF)
    a("s_cbranch_scc1 L_EXIT")
    a("v_mov_b32 v%d, 0" % vP2)
    a("v_mov_b32 v%d, s%d" % (vP2 + 1, sTAG))
    a("v_mov_b32 v%d, 0" % (vP2 + 2))
    a("v_mov_b32 v%d, s%d" % (vP2 + 3, sTAG))
    a("L_POLL2:")
    spin()
    a("buffer_load_dwordx4 %s, v%d, %s, s%d offen %s" % (vr(vP0), vL16, srd(WS), sGO, ld))
    a("buffer_load_dwordx4 %s, v%d, %s, s%d offen offset:1024 %s" % (vr(vP1), vL16, srd(WS), sGO, ld))
    a("s_mov_b32 exec_hi, 0x00ffffff")
    a("buffer_load_dwordx4 %s, v%d, %s, s%d offen offset:2048 %s" % (vr(vP2), vL16, srd(WS), sGO, ld))
    a("s_mov_b32 exec_hi, -1")
    a("s_waitcnt vmcnt(0)")
    tagcheck([vP0, vP1, vP2])
    a("s_cbranch_vccnz L_POLL2")
    stamp(12)
    a("L_DRY2:")
    a("v_add_f32 v%d, v%d, v%d" % (vP0, vP0, vP1))
    a("v_add_f32 v%d, v%d, v%d" % (vP0 + 2, vP0 + 2, vP1 + 2))
    a("v_permlane32_swap_b32 v%d, v%d" % (vP2, vP2 + 2))
    a("v_add_f32 v%d, v%d, v%d" % (vP2, vP2, vP2 + 2))
    a("v_permlane32_swap_b32 v%d, v%d" % (vP0, vP0 + 2))
    a("v_add_f32 v%d, v%d, v%d" % (vP0, vP0, vP0 + 2))
    a("v_and_b32 v%d, 0xffff0000, v%d" % (t2, vCONST))
    a("s_nop 0")
    a("v_permlane16_swap_b32 v%d, v%d" % (vP0, vP2))
    a("v_add_f32 v%d, v%d, v%d" % (vP0, vP0, vP2))
    a("s_nop 1")
    a("v_add_f32_dpp v%d, v%d, v%d row_ror:4 %s" % (vP0, vP0, vP0, DPP))
    a("s_nop 1")
    a("v_add_f32_dpp v%d, v%d, v%d row_ror:8 %s" % (vP0, vP0, vP0, DPP))
    a("v_cvt_pk_bf16_f32 v%d, v%d, v%d" % (vP0, vP0, vP0))
    a("v_and_b32 v%d, 0xffff0000, v%d" % (vP0, vP0))
    a("v_add_f32 v%d, v%d, v%d" % (vP0, vP0, t2))
    a("v_cvt_pk_bf16_f32 v%d, v%d, v%d" % (vP0, vP0, vP0))
    a("v_and_b32 v%d, 0xffff0000, v%d" % (vP0, vP0))
    a("v_mov_b32 v%d, v%d" % (t1, vP0))
    a("s_cmp_eq_u32 s%d, 1" % sDRY)
    a("s_nop 0")
    a("v_permlane16_swap_b32 v%d, v%d" % (vP0, t1))
    a("v_add_f32 v%d, v%d, v%d" % (vP0, vP0, t1))
    a("v_cvt_pk_bf16_f32 v%d, v%d, v%d" % (vP0, vP0, vP0))
    a("s_cbranch_scc1 L_C0")
    a("s_mov_b32 exec_lo, 0xf")
    a("s_mov_b32 exec_hi, 0xf")
    a("buffer_store_short v%d, v%d, %s, 0 offen %s" % (vP0, vD, srd(OUT), outfl))
    a("s_cmp_lg_u32 s%d, 0" % sF)
    a("s_cbranch_scc1 L_EXIT")
    a("s_mov_b64 exec, 1")
    a("v_mov_b32 v%d, 0" % t0)
    a("v_mov_b32 v%d, s%d" % (t1, sTAG))
    a("buffer_store_dword v%d, v%d, %s, 0 offen offset:%d" % (t1, t0, srd(WS), WS_EPOCH))
    a("s_branch L_EXIT")
    a("L_KV2:")
    a("s_setprio 1")
    masks()
    for r in range(16):
        a("v_mov_b32 v%d, 0" % (vAT + r))
    a("v_mov_b32 v%d, 0" % vD)
    a("s_lshl_b32 s%d, s%d, 3" % (sT1, sH))
    a("s_add_u32 s%d, s%d, s%d" % (sT1, sT1, sSP))
    a("s_lshl_b32 s%d, s%d, 10" % (sQ, sT1))
    a("s_add_u32 s%d, s%d, 0x%x" % (sQ, sQ, WS_O))
    a("s_add_u32 s%d, s%d, 0x%x" % (sW1o, sQ, WS_ALT))
    a("s_lshl_b32 s%d, s%d, 7" % (sW2o, sT1))
    a("s_add_u32 s%d, s%d, 0x%x" % (sW2o, sW2o, WS_ML))
    a("s_add_u32 s%d, s%d, 0x%x" % (sF, sW2o, WS_ALT))
    stamp(5)
    a("L_QW:")
    a("ds_read_b32 v%d, v%d offset:%d" % (t2, vD, L_QRDY))
    a("s_waitcnt lgkmcnt(0)")
    a("v_cmp_eq_u32 vcc, 0, v%d" % t2)
    a("s_cbranch_vccnz L_QW")
    stamp(6)
    for t in range(4):
        a("s_mov_b32 exec_lo, 0x%08x" % (0x000f000f << (4 * t)))
        a("s_mov_b32 exec_hi, 0x%08x" % (0x000f000f << (4 * t)))
        a("ds_read_b128 %s, v%d offset:%d" % (vr(vAT + 4 * t), vC, L_QB))
    a("s_mov_b64 exec, -1")
    a("ds_read_b32 v%d, v%d offset:%d" % (vEP, vD, L_TAG))
    a("ds_read_b32 v%d, v%d offset:%d" % (vCONST, vD, L_USEB))
    a("s_waitcnt vmcnt(16) lgkmcnt(2)")
    for L in range(16):
        acc = vS + 4 * (L // 4)
        a("v_mfma_f32_16x16x32_bf16 %s, %s, %s, %s" % (vr(acc), vr(vAT + 4 * (L % 4)), vr(vK + 4 * L), "0" if L % 4 == 0 else vr(acc)))
    sc = [vT + 8, vT + 9, vT + 10, vT + 11]
    for k in range(4):
        for j in range(4):
            if k == 0:
                if j == 2: a("s_nop 1")
                if j == 3: a("s_nop 2")
                a("v_mov_b32_dpp v%d, v%d quad_perm:[0,0,0,0] %s" % (sc[j], vS + 4 * j, DPP))
            else:
                a("v_add_f32_dpp v%d, v%d, v%d quad_perm:[%d,%d,%d,%d] %s" % (sc[j], vS + 4 * j + k, sc[j], k, k, k, k, DPP))
    for rnd in range(2):
        a("v_cvt_pk_bf16_f32 v%d, v%d, v%d" % (t0, sc[0], sc[1]))
        a("v_cvt_pk_bf16_f32 v%d, v%d, v%d" % (t1, sc[2], sc[3]))
        a("v_lshlrev_b32 v%d, 16, v%d" % (sc[0], t0))
        a("v_and_b32 v%d, 0xffff0000, v%d" % (sc[1], t0))
        a("v_lshlrev_b32 v%d, 16, v%d" % (sc[2], t1))
        a("v_and_b32 v%d, 0xffff0000, v%d" % (sc[3], t1))
        if rnd == 0:
            for j in range(4):
                a("v_mul_f32 v%d, %s, v%d" % (sc[j], f32(128 ** -0.5), sc[j]))
    a("v_max_f32 v%d, v%d, v%d" % (t2, sc[0], sc[1]))
    a("v_max3_f32 v%d, v%d, v%d, v%d" % (t2, sc[2], sc[3], t2))
    a("s_mov_b32 exec_lo, 0x11111111")
    a("s_mov_b32 exec_hi, 0x11111111")
    a("v_mov_b32 v%d, 1" % t1)
    a("ds_max_f32 v%d, v%d offset:%d" % (vD, t2, L_MX))
    a("s_mov_b64 exec, 1")
    a("ds_add_u32 v%d, v%d offset:%d" % (vD, t1, L_CNT5))
    a("s_mov_b64 exec, -1")
    vRk = 36
    vMX = vRk + 12
    for o in (9, 11, 13, 15):
        a("v_mov_b32 v%d, v%d" % (vRk + o, vEP))
    a("L_MW:")
    a("ds_read_b32 v%d, v%d offset:%d" % (t2, vD, L_CNT5))
    a("ds_read_b32 v%d, v%d offset:%d" % (vMX, vD, L_MX))
    a("s_waitcnt lgkmcnt(0)")
    a("v_cmp_gt_u32 vcc, 4, v%d" % t2)
    a("s_cbranch_vccnz L_MW")
    stamp(7)
    for j in range(4): a("v_sub_f32 v%d, v%d, v%d" % (sc[j], sc[j], vMX))
    for j in range(4): a("v_mul_f32 v%d, %s, v%d" % (sc[j], f32(LOG2E), sc[j]))
    for j in range(4): a("v_exp_f32 v%d, v%d" % (sc[j], sc[j]))
    a("v_add_f32 v%d, v%d, v%d" % (t2, sc[0], sc[1]))
    a("v_add_f32 v%d, v%d, v%d" % (t1, sc[2], sc[3]))
    for j in range(4): a("v_cvt_pk_bf16_f32 v%d, v%d, v%d" % (sc[j], sc[j], sc[j]))
    a("v_add_f32 v%d, v%d, v%d" % (t2, t2, t1))
    pa = [(aa, i, r) for aa in range(4) for i in range(4) for r in range(4)]
    def pab(n):
        for _ in range(n):
            aa, i, r = pa.pop(0)
            a("v_and_b32_dpp v%d, v%d, v%d row_newbcast:%d %s" % (vK + 16 * aa + 4 * i + r, sc[aa], vM + r, 4 * i, DPP))
    pab(2)
    for ctl in ("row_ror:4 row_mask:0xf", "row_ror:8 row_mask:0xf", "row_bcast:15 row_mask:0xa", "row_bcast:31 row_mask:0xc"):
        a("v_add_f32_dpp v%d, v%d, v%d %s bank_mask:0xf" % (t2, t2, t2, ctl))
        pab(2)
    a("s_lshl_b32 s%d, s%d, 2" % (sT0, sW))
    a("v_mov_b32 v%d, s%d" % (t3, sT0))
    a("v_mov_b32 v%d, 1" % t1)
    a("s_mov_b32 exec_lo, 0")
    a("s_mov_b32 exec_hi, 0x80000000")
    a("ds_write_b32 v%d, v%d offset:%d" % (t3, t2, L_LS - 16))
    a("ds_add_rtn_u32 v%d, v%d, v%d offset:%d" % (t0, vD, t1, L_CNT2))
    a("s_mov_b64 exec, -1")
    pab(len(pa))
    a("v_readfirstlane_b32 s%d, v%d" % (sROLE, vCONST))
    a("s_waitcnt lgkmcnt(0)")
    a("v_readlane_b32 s%d, v%d, 63" % (sT0, t0))
    a("s_nop 0")
    a("s_cmp_lg_u32 s%d, 3" % sT0)
    a("s_cbranch_scc1 L_NOML")
    a("ds_read_b128 %s, v%d offset:%d" % (vr(vRk), vD, L_LS))
    a("s_mov_b64 exec, 0xff")
    a("s_waitcnt lgkmcnt(0)")
    a("v_pk_add_f32 %s, %s, %s" % (vr(vRk, 2), vr(vRk, 2), vr(vRk + 2, 2)))
    a("v_add_f32 v%d, v%d, v%d" % (vRk + 14, vRk, vRk + 1))
    a("s_cmp_eq_u32 s%d, 0" % sROLE)
    a("s_cbranch_scc0 L_MLB")
    a("buffer_store_dwordx4 %s, v%d, %s, s%d offen" % (vr(vRk + 12), vL16, srd(WS), sF))
    a("s_branch L_MLC")
    a("L_MLB:")
    a("buffer_store_dwordx4 %s, v%d, %s, s%d offen %s" % (vr(vRk + 12), vL16, srd(WS), sW2o, st))
    a("L_MLC:")
    a("s_mov_b64 exec, -1")
    def pv(extra):
        for k in range(16):
            a("s_waitcnt vmcnt(%d)" % (15 - k + extra))
            a("v_mfma_f32_16x16x32_bf16 %s, %s, %s, %s" % (vr(vO), vr(vK + 4 * k), vr(vV + 4 * k), "0" if k == 0 else vr(vO)))
    pv(1)
    a("s_branch L_PVD")
    a("L_NOML:")
    stamp(8)
    pv(0)
    a("L_PVD:")
    a("s_mov_b32 exec_hi, 0")
    a("s_nop 6")
    a("ds_write_b128 v%d, %s offset:%d" % (vPW, vr(vO), U_OP * 512))
    a("s_mov_b64 exec, 1")
    a("ds_add_rtn_u32 v%d, v%d, v%d offset:%d" % (t2, vD, t1, L_CNT6))
    a("s_waitcnt lgkmcnt(0)")
    a("v_cmp_ne_u32 vcc, 3, v%d" % t2)
    stamp(9)
    a("s_cbranch_vccnz L_EXIT")
    a("s_mov_b64 exec, -1")
    reduce4(U_OP, vRk)
    a("s_cmp_eq_u32 s%d, 0" % sROLE)
    a("s_cbranch_scc0 L_OB")
    a("buffer_store_dwordx4 %s, v%d, %s, s%d offen" % (vr(vRk + 8), vL16, srd(WS), sW1o))
    a("s_branch L_EXIT")
    a("L_OB:")
    a("buffer_store_dwordx4 %s, v%d, %s, s%d offen %s" % (vr(vRk + 8), vL16, srd(WS), sQ, st))
    a("L_EXIT:")
    if stamps:
        a("s_waitcnt vmcnt(0)")
        stamp(13)
        a("s_waitcnt lgkmcnt(0)")
        a("s_lshl_b32 s%d, s2, 3" % sT0)
        a("s_add_u32 s%d, s%d, s%d" % (sT0, sT0, sW))
        a("s_lshl_b32 s%d, s%d, 7" % (sT0, sT0))
        a("s_add_u32 s%d, s%d, 0x%x" % (sT0, sT0, WS_ST))
        a("s_mov_b64 exec, 1")
        a("v_mov_b32 v1, 0")
        for i in range(16):
            if i < NST:
                a("v_mov_b32 v2, s%d" % (72 + 2 * i)); a("v_mov_b32 v3, s%d" % (73 + 2 * i))
            else:
                a("v_mov_b32 v2, s100"); a("v_mov_b32 v3, 0")
            a("buffer_store_dwordx2 v[2:3], v1, %s, s%d offen offset:%d" % (srd(WS), sT0, i * 8))
            a("s_nop 1")
    a("L_END:")
    a("s_endpgm")
    body = a.text()
    errs = hazard.check(body)
    if errs:
        print("\n".join(errs)); raise SystemExit("hazards")
    return wrap(body, 256, 512, LDS_BYTES, NV, sgpr=102)

if __name__ == "__main__":
    open("k15.s", "w").write(gen(khold=6))
    open("k15s.s", "w").write(gen(stamps=True, khold=6))
    open("k15s_kh4.s", "w").write(gen(stamps=True, khold=4))
    open("k15s_kh8.s", "w").write(gen(stamps=True, khold=8))
    open("k15s_dw.s", "w").write(gen(stamps=True, khold=6, dwait=True))
    open("k15s_ack.s", "w").write(gen(stamps=True, khold=6, ackpub=True))
```

```python
import sys, struct
from glib import *
import hazard

def f32(x):
    return "0x%08x" % struct.unpack("<I", struct.pack("<f", x))[0]

WS_EPOCH = 0
WS_ML = 0x8000
WS_O = 0x10000
WS_Q = 0x50000
WS_H = 0x90000
WS_F = 0xD0000
WS_ALT = 0x110000
WS_ST = 0x8000000
U_XN, U_QP, U_HP, U_Q2, U_OP, U_FP, U_MISC = 0, 5, 9, 13, 17, 21, 25
L_QB = U_MISC * 512
L_MX = L_QB + 256
L_CNT1, L_CNT2, L_CNT3 = L_QB + 260, L_QB + 264, L_QB + 268
L_LS = L_QB + 272
L_TAG = L_QB + 288
L_CNT4, L_CNT5, L_CNT6 = L_QB + 292, L_QB + 296, L_QB + 300
L_CNT7, L_QRDY, L_USEB = L_QB + 304, L_QB + 308, L_QB + 312
LDS_BYTES = L_QB + 512
OOB = 0x7ff00000
NST = 14
LOG2E = 1.4426950408889634
SPIN = 0x40000
LSPIN = 0x1000000

def gen(stamps=False, codekb=7, khold=6, nAq=12, w1bit=0, ackpub=False, twarm=False):
    a = Asm()
    nt, st, ld = "nt", "sc1", "sc1"
    def stamp(k):
        if stamps: a("s_memrealtime s[%d:%d]" % (72 + 2 * k, 73 + 2 * k))
    X, K, V, WQ, W2, W1, B1, B2, OUT, WS = 4, 8, 12, 16, 20, 24, 28, 32, 36, 40
    sH, sSP, sW, sROLE, sTAG, sT3, sT0, sT1, sT2, sRHO, sC, sSPIN, sQ, sW1o, sW2o, sF = range(44, 60)
    sM = 60
    sGO, sGM, sFO, sGQ, sHT, sTAGA = 60, 61, 62, 63, 71, 65
    sKV = 68
    sLS = 3
    def srd(n): return "s[%d:%d]" % (n, n + 3)
    def vr(n, c=4): return "v[%d:%d]" % (n, n + c - 1)
    vLANE, vG, vNN = 1, 2, 3
    vT = 4
    t0, t1, t2, t3 = vT, vT + 1, vT + 2, vT + 3
    vZ, vONE = vT + 9, vT + 10
    vM = 16
    vA, vB, vC, vD, vPW, vL8, vL16, vE, vCONST, vEP = range(20, 30)
    vXS, vW1o = 30, 35
    vR = 36
    vXN = 52
    vA0, vA1 = 60, 64
    vAQ, vAH = 68, 72
    vWQ = 76
    vXW = 96
    vB1o = 101
    vW2 = 108
    vPA2 = 140
    vP0, vP1, vP2 = 172, 176, 180
    vFAC = 188
    vQ0, vQ1 = 192, 196
    vPF = 208
    vK, vV, vAT, vS, vO = 80, 144, 36, 60, 76
    NV = 212
    DPP = "row_mask:0xf bank_mask:0xf"

    def masks():
        a("v_and_b32 v%d, 1, v%d" % (t3, vNN))
        a("v_lshlrev_b32 v%d, 4, v%d" % (t3, t3))
        a("v_mov_b32 v%d, 0xffff" % (vT + 4))
        a("v_lshlrev_b32 v%d, v%d, v%d" % (t3, t3, vT + 4))
        a("v_lshrrev_b32 v%d, 1, v%d" % (vT + 4, vNN))
        for r in range(4):
            a("v_cmp_eq_u32 s[%d:%d], %d, v%d" % (sM + 2 * r, sM + 2 * r + 1, r, vT + 4))
        a("v_lshlrev_b32 v%d, 3, v%d" % (vL8, vLANE))
        a("s_and_b32 s%d, s%d, 3" % (sT1, sW))
        a("s_lshl_b32 s%d, s%d, 9" % (sT1, sT1))
        a("v_lshl_add_u32 v%d, v%d, 4, s%d" % (vPW, vG, sT1))
        a("v_lshl_add_u32 v%d, v%d, 5, v%d" % (vPW, vNN, vPW))
        for r in range(4):
            a("v_cndmask_b32 v%d, 0, v%d, s[%d:%d]" % (vM + r, t3, sM + 2 * r, sM + 2 * r + 1))
    def lds_wait(label, vaddr, off, need, extra=None):
        a(label + ":")
        a("s_sub_u32 s%d, s%d, 1" % (sLS, sLS))
        a("s_cbranch_scc1 L_EXIT")
        a("ds_read_b32 v%d, v%d offset:%d" % (t2, vaddr, off))
        if extra: a(extra)
        a("s_waitcnt lgkmcnt(0)")
        a("v_cmp_gt_u32 vcc, %d, v%d" % (need, t2))
        a("s_cbranch_vccnz " + label)
    def red_issue(unit, dst):
        for k in range(2):
            a("ds_read2st64_b64 %s, v%d offset0:%d offset1:%d" % (vr(dst + 4 * k), vL8, unit + 2 * k, unit + 2 * k + 1))
    def red_finish(dst):
        a("s_waitcnt lgkmcnt(1)")
        a("v_pk_add_f32 %s, %s, %s" % (vr(dst, 2), vr(dst, 2), vr(dst + 2, 2)))
        a("s_waitcnt lgkmcnt(0)")
        a("v_pk_add_f32 %s, %s, %s" % (vr(dst + 4, 2), vr(dst + 4, 2), vr(dst + 6, 2)))
        a("v_add_f32 v%d, v%d, v%d" % (dst + 8, dst, dst + 4))
        a("v_add_f32 v%d, v%d, v%d" % (dst + 10, dst + 1, dst + 5))
    def arrive(cnt, unit, dst, vz, vone, notlast):
        a("s_mov_b64 exec, 1")
        a("ds_add_rtn_u32 v%d, v%d, v%d offset:%d" % (t2, vz, vone, cnt))
        a("s_mov_b64 exec, -1")
        red_issue(unit, dst)
        a("s_waitcnt lgkmcnt(2)")
        a("v_readfirstlane_b32 s%d, v%d" % (sT0, t2))
        a("s_nop 0")
        a("s_cmp_eq_u32 s%d, 3" % sT0)
        a("s_cbranch_scc0 " + notlast)
        red_finish(dst)
    def tagcheck(bufs, tg):
        tmps = []
        n = 0
        for b in bufs:
            for o in (1, 3):
                a("v_xor_b32 v%d, s%d, v%d" % (vT + n, tg, b + o)); tmps.append(vT + n); n += 1
        while len(tmps) > 1:
            if len(tmps) >= 3:
                a("v_or3_b32 v%d, v%d, v%d, v%d" % (tmps[0], tmps[0], tmps[1], tmps[2])); tmps = tmps[3:] + [tmps[0]]
            else:
                a("v_or_b32 v%d, v%d, v%d" % (tmps[0], tmps[0], tmps[1])); tmps = [tmps[0]]
        a("v_cmp_ne_u32 vcc, 0, v%d" % tmps[0])
    def spin():
        a("s_sub_u32 s%d, s%d, 1" % (sSPIN, sSPIN))
        a("s_cbranch_scc1 L_EXIT")
    def rbf(v):
        a("v_cvt_pk_bf16_f32 v%d, v%d, v%d" % (v, v, v))
        a("v_and_b32 v%d, 0xffff0000, v%d" % (v, v))

    a("s_cmp_ge_u32 s2, 256")
    a("s_cbranch_scc1 L_END")
    if stamps:
        for k in range(NST): a("s_mov_b64 s[%d:%d], 0" % (72 + 2 * k, 73 + 2 * k))
    stamp(0)
    for (r, off) in ((X, 0), (WQ, 24), (K, 8), (V, 16), (W1, 48), (WS, 96)):
        a("s_load_dwordx2 s[%d:%d], s[0:1], %d" % (r, r + 1, off))
    a("v_lshrrev_b32 v%d, 6, v0" % vT)
    a("v_and_b32 v%d, 63, v0" % vLANE)
    a("v_readfirstlane_b32 s%d, v%d" % (sW, vT))
    a("s_and_b32 s%d, s2, 31" % sH)
    a("s_lshr_b32 s%d, s2, 5" % sSP)
    a("v_lshlrev_b32 v%d, 4, v%d" % (vL16, vLANE))
    a("v_lshrrev_b32 v%d, 4, v%d" % (vG, vLANE))
    a("v_and_b32 v%d, 15, v%d" % (vNN, vLANE))
    a("v_lshlrev_b32 v%d, 4, v%d" % (vE, vNN))
    a("s_mov_b32 s%d, 0x%x" % (WS + 2, 256 << 20))
    a("s_mov_b32 s%d, 0x20000" % (WS + 3))
    a("s_mov_b32 s%d, 0x%x" % (sLS, LSPIN))
    a("s_cmp_ge_u32 s%d, 4" % sW)
    a("s_cbranch_scc1 L_KV")
    a("s_setprio 3")
    a("s_mov_b32 s%d, 0x%x" % (WQ + 2, 640 * 8192))
    a("s_mov_b32 s%d, 0x20000" % (WQ + 3))
    a("s_movk_i32 s%d, 1280" % (X + 2))
    a("s_mov_b32 s%d, 0x20000" % (X + 3))
    a("v_lshl_add_u32 v%d, v%d, 13, v%d" % (vA, vG, vE))
    a("s_lshl_b32 s%d, s%d, 2" % (sT2, sSP))
    a("s_add_u32 s%d, s%d, s%d" % (sT2, sT2, sW))
    a("s_mul_i32 s%d, s%d, %d" % (sQ, sT2, 20 * 8192))
    a("s_lshl_b32 s%d, s%d, 8" % (sT0, sH))
    a("s_add_u32 s%d, s%d, s%d" % (sQ, sQ, sT0))
    a("v_lshlrev_b32 v%d, 2, v%d" % (t1, vLANE))
    a("v_mov_b32 v%d, 0xff800000" % (vT + 8))
    a("v_mov_b32 v%d, 0" % (vT + 9))
    a("v_mov_b32 v%d, 0" % (vT + 10))
    a("v_mov_b32 v%d, 0" % (vT + 11))
    a("v_mov_b32 v%d, 0" % (vT + 4))
    a("v_mov_b32 v%d, 0" % (vT + 5))
    a("v_mov_b32 v%d, 0" % (vT + 6))
    a("v_mov_b32 v%d, 0" % (vT + 7))
    a("ds_write_b128 v%d, %s offset:%d" % (vZ, vr(vT + 8), L_MX))
    a("ds_write_b128 v%d, %s offset:%d" % (vZ, vr(vT + 4), L_TAG))
    a("ds_write_b128 v%d, %s offset:%d" % (vZ, vr(vT + 4), L_CNT7))
    a("s_waitcnt lgkmcnt(0)")
    a("buffer_load_dwordx4 %s, v%d, %s, 0 offen" % (vr(vXS), vL16, srd(X)))
    a("buffer_load_dword v%d, v%d, %s, 0 offen offset:1024" % (vXS + 4, t1, srd(X)))
    a("buffer_load_dword v%d, v%d, %s, 0 offen offset:%d sc1" % (vEP, vZ, srd(WS), WS_EPOCH))
    for k in range(5):
        a("buffer_load_dwordx4 %s, v%d, %s, s%d offen %s" % (vr(vWQ + 4 * k), vA, srd(WQ), sQ, nt))
        if k < 4: a("s_add_u32 s%d, s%d, 0x8000" % (sQ, sQ))
    a("s_barrier")
    a("s_branch L_AUX2")
    a("L_KV:")
    a("s_mov_b32 s%d, 0x%x" % (K + 2, 64 << 20))
    a("s_mov_b32 s%d, 0x20000" % (K + 3))
    a("s_lshl_b32 s%d, s%d, 21" % (sKV, sH))
    a("s_lshl_b32 s%d, s%d, 12" % (sT0, sSP))
    a("s_add_u32 s%d, s%d, s%d" % (sKV, sKV, sT0))
    a("s_lshl_b32 s%d, s%d, 15" % (sT0, sW))
    a("s_add_u32 s%d, s%d, s%d" % (sKV, sKV, sT0))
    a("s_add_u32 s%d, s%d, 0x%x" % (sKV, sKV, 0x180000 - (4 << 15)))
    for j in range(1, 4):
        a("s_add_u32 s%d, s%d, 0x%x" % (sKV + j, sKV, j << 17))
    a("v_lshrrev_b32 v%d, 2, v%d" % (t2, vNN))
    a("v_lshlrev_b32 v%d, 8, v%d" % (vA, t2))
    a("v_and_b32 v%d, 3, v%d" % (t3, vNN))
    a("v_lshlrev_b32 v%d, 4, v%d" % (vC, t3))
    a("v_lshl_add_u32 v%d, v%d, 6, v%d" % (vC, vG, vC))
    a("v_add_u32 v%d, v%d, v%d" % (vA, vA, vC))
    a("v_mov_b32 v%d, 0" % vD)
    if codekb:
        a("s_cmp_lt_u32 s2, 232")
        a("s_cbranch_scc1 L_NOPF")
        a("s_cmp_lg_u32 s%d, 4" % sW)
        a("s_cbranch_scc1 L_NOPF")
        a("s_getpc_b64 s[%d:%d]" % (sM, sM + 1))
        for i in range(codekb):
            if i and i % 4 == 0:
                a("s_add_u32 s%d, s%d, 4096" % (sM, sM)); a("s_addc_u32 s%d, s%d, 0" % (sM + 1, sM + 1))
            a("global_load_dwordx4 %s, v%d, s[%d:%d] offset:%d" % (vr(vPF), vL16, sM, sM + 1, (i % 4) * 1024))
        a("L_NOPF:")
    if twarm:
        a("s_load_dwordx2 s[%d:%d], s[0:1], 32" % (W2, W2 + 1))
        a("s_load_dwordx2 s[%d:%d], s[0:1], 64" % (B1, B1 + 1))
        a("s_mov_b32 s%d, 0x%x" % (V + 2, 64 << 20))
        a("s_mov_b32 s%d, 0x20000" % (V + 3))
        a("s_mov_b32 s%d, %d" % (W2 + 2, 4096 * 1280)); a("s_mov_b32 s%d, 0x20000" % (W2 + 3))
        a("s_mov_b32 s%d, %d" % (B1 + 2, 1728 * 1280)); a("s_mov_b32 s%d, 0x20000" % (B1 + 3))
        a("s_mov_b32 s%d, %d" % (W1 + 2, 640 * 3456)); a("s_mov_b32 s%d, 0x20000" % (W1 + 3))
        a("v_lshlrev_b32 v%d, 20, v%d" % (t0, vLANE))
    a("s_setprio 2")
    a("s_waitcnt lgkmcnt(0)")
    a("s_barrier")
    if twarm:
        a("s_cmp_lg_u32 s%d, 7" % sW)
        a("s_cbranch_scc1 L_NOTW")
        a("s_mov_b64 exec, 0x3f")
        a("buffer_load_dword v%d, v%d, %s, s%d offen" % (vPF, vD, srd(V), sKV))
        a("buffer_load_dword v%d, v%d, %s, 0 offen" % (vPF + 1, t0, srd(W2)))
        a("buffer_load_dword v%d, v%d, %s, 0 offen" % (vPF + 2, t0, srd(B1)))
        a("buffer_load_dword v%d, v%d, %s, 0 offen" % (vPF + 3, t0, srd(W1)))
        a("s_mov_b64 exec, -1")
        a("L_NOTW:")
    stamp(3)
    def kload(L):
        a("buffer_load_dwordx4 %s, v%d, %s, s%d offen offset:%d %s" % (vr(vK + 4 * L), vA, srd(K), sKV + L // 4, (L % 4) * 1024, nt))
    for L in range(16):
        if L == khold: a("s_branch L_TH")
        if L >= khold: a("L_KF%d:" % L)
        kload(L)
    a("L_KF16:")
    stamp(1)
    a("s_setprio 1")
    a("s_mov_b32 s%d, 0x%x" % (V + 2, 64 << 20))
    a("s_mov_b32 s%d, 0x20000" % (V + 3))
    a("v_lshl_add_u32 v%d, v%d, 10, v%d" % (vB, vG, vE))
    for L in range(16):
        a("buffer_load_dwordx4 %s, v%d, %s, s%d offen offset:%d %s" % (vr(vV + 4 * L), vB, srd(V), sKV + L // 4, (L % 4) * 256, nt))
    stamp(4)
    a("s_branch L_KV2")
    a("L_TH:")
    for L in range(khold, 16):
        a("ds_read_b32 v%d, v%d offset:%d" % (t2, vD, L_CNT1))
        a("s_waitcnt vmcnt(%d) lgkmcnt(0)" % (khold - 1))
        a("v_cmp_gt_u32 vcc, 5, v%d" % t2)
        a("s_cbranch_vccz L_KF%d" % L)
        kload(L)
    a("s_branch L_KF16")
    a("L_AUX2:")
    stamp(1)
    a("s_mov_b32 s%d, 0x%x" % (W1 + 2, 640 * 3456))
    a("s_mov_b32 s%d, 0x20000" % (W1 + 3))
    a("s_lshr_b32 s%d, s2, %d" % (sHT, w1bit + 1))
    if w1bit:
        a("s_lshl_b32 s%d, s%d, %d" % (sHT, sHT, w1bit))
        a("s_and_b32 s%d, s2, %d" % (sT1, (1 << w1bit) - 1))
        a("s_add_u32 s%d, s%d, s%d" % (sHT, sHT, sT1))
    a("s_bitcmp1_b32 s2, %d" % w1bit)
    a("s_cselect_b32 s%d, 127, s%d" % (sHT, sHT))
    a("s_and_b32 s%d, s%d, 7" % (sT3, sHT))
    a("s_mul_i32 s%d, s%d, 20" % (sT1, sT3))
    a("s_add_u32 s%d, s%d, s%d" % (sT3, sT1, sW))
    a("s_mul_i32 s%d, s%d, %d" % (sW1o, sT3, 4 * 3456))
    a("s_lshr_b32 s%d, s%d, 3" % (sT1, sHT))
    a("s_lshl_b32 s%d, s%d, 8" % (sT1, sT1))
    a("s_add_u32 s%d, s%d, s%d" % (sW1o, sW1o, sT1))
    a("s_cmp_ge_u32 s%d, 112" % sHT)
    a("s_cselect_b32 s%d, 0x%x, s%d" % (sW1o, OOB, sW1o))
    a("v_mul_u32_u24 v%d, 3456, v%d" % (vW1o, vG))
    a("v_add_u32 v%d, v%d, v%d" % (vW1o, vW1o, vE))
    for (r, off) in ((B1, 56), (B2, 72), (OUT, 80)):
        a("s_load_dwordx2 s[%d:%d], s[0:1], %d" % (r, r + 1, off))
    for (r, n) in ((B1, 3456), (B2, 1280), (OUT, 1280)):
        a("s_movk_i32 s%d, %d" % (r + 2, n)); a("s_mov_b32 s%d, 0x20000" % (r + 3))
    a("s_mov_b32 s%d, 0x20000" % (W2 + 3))
    a("s_mul_i32 s%d, s%d, 80" % (sT0, sT2))
    a("v_lshl_add_u32 v%d, v%d, 2, s%d" % (vB, vG, sT0))
    a("s_lshl_b32 s%d, s%d, 4" % (sT0, sT3))
    a("v_lshl_add_u32 v%d, v%d, 2, s%d" % (vC, vG, sT0))
    a("s_sub_u32 s%d, s2, 160" % sT0)
    a("s_mul_i32 s%d, s%d, 205" % (sT1, sT0))
    a("s_lshr_b32 s%d, s%d, 10" % (sT1, sT1))
    a("s_mul_i32 s%d, s%d, 5" % (sT2, sT1))
    a("s_sub_u32 s%d, s%d, s%d" % (sT2, sT0, sT2))
    a("s_cmp_ge_u32 s2, 230")
    a("s_cselect_b32 s%d, 2, 1" % sROLE)
    a("s_cmp_lt_u32 s2, 160")
    a("s_cselect_b32 s%d, 0, s%d" % (sROLE, sROLE))
    a("s_cselect_b32 s%d, s%d, s%d" % (sRHO, sH, sT1))
    a("s_cselect_b32 s%d, s%d, s%d" % (sC, sSP, sT2))
    a("s_cselect_b32 s%d, 32, 64" % sT0)
    a("s_mov_b32 s%d, %d" % (W2 + 2, 1728 * 1280))
    a("s_cselect_b32 s%d, %d, s%d" % (W2 + 2, 4096 * 1280, W2 + 2))
    a("s_load_dwordx2 s[%d:%d], s[0:1], s%d" % (W2, W2 + 1, sT0))
    masks()
    vF = vR
    a("s_waitcnt vmcnt(6)")
    stamp(2)
    for k in range(5):
        a("v_lshlrev_b32 v%d, 16, v%d" % (vF + 2 * k, vXS + k))
        a("v_and_b32 v%d, 0xffff0000, v%d" % (vF + 2 * k + 1, vXS + k))
    a("v_pk_add_f32 %s, %s, %s" % (vr(t0, 2), vr(vF, 2), vr(vF + 2, 2)))
    a("v_pk_add_f32 %s, %s, %s" % (vr(t2, 2), vr(vF + 4, 2), vr(vF + 6, 2)))
    a("v_pk_add_f32 %s, %s, %s" % (vr(t0, 2), vr(t0, 2), vr(vF + 8, 2)))
    a("v_pk_add_f32 %s, %s, %s" % (vr(t0, 2), vr(t0, 2), vr(t2, 2)))
    a("v_add_f32 v%d, v%d, v%d" % (t0, t0, t1))
    def wave_sum(v, sdst):
        for ctl in ("row_ror:8", "row_ror:4", "row_ror:2", "row_ror:1", "row_bcast:15 row_mask:0xa", "row_bcast:31 row_mask:0xc"):
            a("s_nop 1")
            rm = "" if "row_mask" in ctl else " row_mask:0xf"
            a("v_add_f32_dpp v%d, v%d, v%d %s%s bank_mask:0xf" % (v, v, v, ctl, rm))
        a("s_nop 0")
        a("v_readlane_b32 s%d, v%d, 63" % (sdst, v))
    wave_sum(t0, sT1)
    a("v_mov_b32 v%d, %s" % (t1, f32(1.0 / 640)))
    a("s_nop 0")
    a("v_mul_f32 v%d, s%d, v%d" % (t0, sT1, t1))
    vMEAN = vT + 4
    a("v_cvt_pk_bf16_f32 v%d, v%d, v%d" % (vMEAN, t0, t0))
    a("v_and_b32 v%d, 0xffff0000, v%d" % (vMEAN, vMEAN))
    for k in range(10):
        a("v_sub_f32 v%d, v%d, v%d" % (t2 + (k & 1), vF + k, t0))
        if k < 2:
            a("v_mul_f32 v%d, v%d, v%d" % (vT + 6 + (k & 1), t2 + (k & 1), t2 + (k & 1)))
        else:
            a("v_fmac_f32 v%d, v%d, v%d" % (vT + 6 + (k & 1), t2 + (k & 1), t2 + (k & 1)))
    a("v_add_f32 v%d, v%d, v%d" % (t0, vT + 6, vT + 7))
    wave_sum(t0, sT1)
    for k in range(10):
        a("v_sub_f32 v%d, v%d, v%d" % (vF + k, vF + k, vMEAN))
    a("v_mul_f32 v%d, s%d, v%d" % (t0, sT1, t1))
    rbf(t0)
    a("v_add_f32 v%d, %s, v%d" % (t0, f32(1e-5), t0))
    rbf(t0)
    a("v_sqrt_f32 v%d, v%d" % (t0, t0))
    for k in range(5):
        a("v_cvt_pk_bf16_f32 v%d, v%d, v%d" % (vXS + k, vF + 2 * k, vF + 2 * k + 1))
    rbf(t0)
    a("v_rcp_f32 v%d, v%d" % (t0, t0))
    for k in range(5):
        a("v_lshlrev_b32 v%d, 16, v%d" % (vF + 2 * k, vXS + k))
        a("v_and_b32 v%d, 0xffff0000, v%d" % (vF + 2 * k + 1, vXS + k))
    for k in range(10):
        a("v_mul_f32 v%d, v%d, v%d" % (vF + k, vF + k, t0))
    for k in range(10):
        a("v_cvt_pk_bf16_f32 v%d, v%d, v%d" % (vF + k, vF + k, vF + k))
    a("v_lshlrev_b32 v%d, 5, v%d" % (t0, vLANE))
    a("ds_write_b128 v%d, %s" % (t0, vr(vF)))
    a("ds_write_b128 v%d, %s offset:16" % (t0, vr(vF + 4)))
    a("ds_write_b64 v%d, %s offset:2048" % (vL8, vr(vF + 8, 2)))
    for i in range(5):
        a("ds_read_b32 v%d, v%d offset:%d" % (vXN + i, vB, 16 * i))
    for j in range(5):
        a("ds_read_b32 v%d, v%d offset:%d" % (vXW + j, vC, 64 * j))
    vGA, vGB, vFA = vA, vB, vC
    a("v_and_b32 v%d, 1, v%d" % (t3, vG))
    a("v_lshlrev_b32 v%d, 3, v%d" % (t3, t3))
    a("v_lshrrev_b32 v%d, 1, v%d" % (t2, vG))
    a("v_add_u32 v%d, v%d, v%d" % (t3, t3, t2))
    a("v_mul_u32_u24 v%d, 1280, v%d" % (vD, t3))
    a("v_add_u32 v%d, v%d, v%d" % (vD, vD, vE))
    a("s_lshl_b32 s%d, s%d, 2" % (sT0, sRHO))
    a("s_add_u32 s%d, s%d, s%d" % (sT0, sT0, sW))
    a("s_mul_i32 s%d, s%d, %d" % (sW2o, sT0, 32 * 1280))
    a("s_lshl_b32 s%d, s%d, 8" % (sT0, sC))
    a("s_add_u32 s%d, s%d, s%d" % (sW2o, sW2o, sT0))
    a("s_getreg_b32 s%d, hwreg(HW_REG_XCC_ID, 0, 4)" % sTAGA)
    a("s_add_u32 s%d, s%d, 1" % (sTAGA, sTAGA))
    a("s_lshl_b32 s%d, s%d, 27" % (sTAGA, sTAGA))
    a("s_lshl_b32 s%d, s%d, 13" % (sGQ, sH))
    a("s_lshl_b32 s%d, s%d, 10" % (sT1, sSP))
    a("s_add_u32 s%d, s%d, s%d" % (sT1, sT1, sGQ))
    a("s_add_u32 s%d, s%d, 0x%x" % (sQ, sT1, WS_Q))
    a("s_add_u32 s%d, s%d, 0x%x" % (sT2, sQ, WS_ALT))
    a("s_lshl_b32 s%d, s%d, 11" % (sT0, sW))
    a("s_add_u32 s%d, s%d, s%d" % (sGQ, sGQ, sT0))
    a("s_add_u32 s%d, s%d, 0x%x" % (sGQ, sGQ, WS_Q + WS_ALT))
    a("s_mov_b32 s%d, 0x%x" % (sSPIN, SPIN))
    a("v_mov_b32 v%d, 1" % vONE)
    a("s_waitcnt lgkmcnt(0)")
    for i in range(5):
        for r in range(4):
            a("v_and_b32 v%d, v%d, v%d" % (vPA2 + 4 * i + r, vM + r, vXN + i))
    a("s_waitcnt vmcnt(4)")
    a("v_readfirstlane_b32 s%d, v%d" % (sTAG, vEP))
    for i in range(5):
        if i: a("s_waitcnt vmcnt(%d)" % (4 - i))
        a("v_mfma_f32_16x16x32_bf16 %s, %s, %s, %s" % (vr(vAQ), vr(vPA2 + 4 * i), vr(vWQ + 4 * i), "0" if i == 0 else vr(vAQ)))
    stamp(4)
    a("s_add_u32 s%d, s%d, 1" % (sTAG, sTAG))
    a("s_xor_b32 s%d, s%d, s%d" % (sTAGA, sTAGA, sTAG))
    a("v_mov_b32 v%d, s%d" % (vR + 9, sTAGA))
    a("v_mov_b32 v%d, s%d" % (vR + 11, sTAGA))
    a("s_mov_b32 exec_hi, 0")
    a("s_nop 2")
    a("ds_write_b128 v%d, %s offset:%d" % (vPW, vr(vAQ), U_QP * 512))
    arrive(L_CNT1, U_QP, vR, vZ, vONE, "L_WP")
    a("buffer_store_dwordx4 %s, v%d, %s, s%d offen" % (vr(vR + 8), vL16, srd(WS), sT2))
    if ackpub: a("s_waitcnt vmcnt(0)")
    a("s_mov_b64 exec, 1")
    a("ds_add_u32 v%d, v%d offset:%d" % (vZ, vONE, L_CNT1))
    a("s_mov_b64 exec, -1")
    stamp(5)
    a("s_branch L_QP")
    lds_wait("L_WP", vZ, L_CNT1, 5)
    a("L_QP:")
    def qloads():
        a("buffer_load_dwordx4 %s, v%d, %s, s%d offen %s" % (vr(vQ0), vL16, srd(WS), sGQ, ld))
        a("buffer_load_dwordx4 %s, v%d, %s, s%d offen offset:1024 %s" % (vr(vQ1), vL16, srd(WS), sGQ, ld))
    qloads()
    for j in range(5):
        if j: a("s_add_u32 s%d, s%d, %d" % (sW1o, sW1o, 16 * 3456))
        a("buffer_load_dwordx4 %s, v%d, %s, s%d offen %s" % (vr(vWQ + 4 * j), vW1o, srd(W1), sW1o, nt))
    a("v_lshrrev_b32 v%d, 3, v%d" % (vGB, vLANE))
    a("v_and_b32 v%d, 7, v%d" % (t3, vLANE))
    a("s_lshl_b32 s%d, s%d, 8" % (sT0, sW))
    a("v_lshl_add_u32 v%d, v%d, 4, s%d" % (vGA, t3, sT0))
    a("v_lshl_add_u32 v%d, v%d, 10, v%d" % (vGA, vGB, vGA))
    a("v_lshlrev_b32 v%d, 7, v%d" % (vGB, vGB))
    a("v_lshrrev_b32 v%d, 5, v%d" % (vT + 5, vLANE))
    a("v_lshl_add_u32 v%d, v%d, 1, v%d" % (vT + 6, t3, vT + 5))
    a("s_lshl_b32 s%d, s%d, 7" % (sT0, sRHO))
    a("s_lshl_b32 s%d, s%d, 5" % (sT1, sW))
    a("s_add_u32 s%d, s%d, s%d" % (sT0, sT0, sT1))
    a("v_add_lshl_u32 v%d, v%d, s%d, 1" % (vB1o, vT + 6, sT0))
    a("v_lshrrev_b32 v%d, 2, v%d" % (vFA, vLANE))
    a("v_mul_u32_u24 v%d, 3072, v%d" % (vFA, vFA))
    a("v_and_b32 v%d, 3, v%d" % (t3, vLANE))
    a("v_lshl_add_u32 v%d, v%d, 4, v%d" % (vFA, t3, vFA))
    a("s_mul_i32 s%d, s%d, %d" % (sFO, sC, 16 * 3072))
    a("s_lshl_b32 s%d, s%d, 6" % (sT1, sRHO))
    a("s_add_u32 s%d, s%d, s%d" % (sFO, sFO, sT1))
    a("s_add_u32 s%d, s%d, 0x%x" % (sFO, sFO, WS_F))
    a("s_lshl_b32 s%d, s%d, 13" % (sGO, sRHO))
    a("s_add_u32 s%d, s%d, 0x%x" % (sGO, sGO, WS_O + WS_ALT))
    a("s_lshl_b32 s%d, s%d, 10" % (sGM, sH))
    a("s_add_u32 s%d, s%d, 0x%x" % (sGM, sGM, WS_ML + WS_ALT))
    a("s_cmp_eq_u32 s%d, 0" % sROLE)
    a("s_cbranch_scc1 L_C0")
    a("s_add_u32 s%d, s%d, 0x%x" % (sGO, sGO, (WS_H - WS_O - WS_ALT) & 0xffffffff))
    a("s_add_u32 s%d, s%d, %d" % (sFO, sFO, 32 * 64))
    a("s_cmp_eq_u32 s%d, 1" % sROLE)
    a("s_cbranch_scc1 L_C0")
    a("s_sub_u32 s%d, s2, 230" % sF)
    a("s_lshl_b32 s%d, s%d, 2" % (sF, sF))
    a("s_add_u32 s%d, s%d, s%d" % (sF, sF, sW))
    a("v_lshl_add_u32 v%d, v%d, 1, v%d" % (vT + 5, t3, vT + 5))
    a("s_lshl_b32 s%d, s%d, 3" % (sT0, sF))
    a("v_add_lshl_u32 v%d, v%d, s%d, 1" % (vD, vT + 5, sT0))
    a("s_mul_i32 s%d, s%d, 3072" % (sGO, sF))
    a("s_add_u32 s%d, s%d, 0x%x" % (sGO, sGO, WS_F))
    a("s_branch L_C0")
    a("L_QR:")
    spin()
    a("s_cmp_lg_u32 s%d, 0x%x" % (sSPIN, SPIN - nAq))
    a("s_cbranch_scc1 L_QR2")
    a("s_sub_u32 s%d, s%d, 0x%x" % (sGQ, sGQ, WS_ALT))
    a("s_mov_b32 s%d, s%d" % (sTAGA, sTAG))
    a("v_mov_b32 v%d, s%d" % (vR + 9, sTAG))
    a("v_mov_b32 v%d, s%d" % (vR + 11, sTAG))
    a("ds_write_b32 v%d, v%d offset:%d" % (vZ, vONE, L_USEB))
    red_issue(U_QP, vR)
    red_finish(vR)
    a("buffer_store_dwordx4 %s, v%d, %s, s%d offen %s" % (vr(vR + 8), vL16, srd(WS), sQ, st))
    a("L_QR2:")
    qloads()
    a("s_waitcnt vmcnt(0)")
    a("L_C0:")
    a("s_waitcnt vmcnt(5)")
    tagcheck([vQ0, vQ1], sTAGA)
    a("s_cbranch_vccnz L_QR")
    a("v_add_f32 v%d, v%d, v%d" % (vQ0, vQ0, vQ1))
    a("v_add_f32 v%d, v%d, v%d" % (vQ0 + 1, vQ0 + 2, vQ1 + 2))
    a("s_lshl_b32 s%d, s%d, 9" % (sT1, sW))
    a("v_add_u32 v%d, s%d, v%d" % (t0, sT1, vL8))
    a("s_mov_b32 s%d, 0x%x" % (sSPIN, SPIN))
    a("ds_write_b64 v%d, %s offset:%d" % (t0, vr(vQ0, 2), U_Q2 * 512))
    arrive(L_CNT3, U_Q2, vR, vZ, vONE, "L_QD")
    a("v_cvt_pk_bf16_f32 v%d, v%d, v%d" % (vR, vR + 8, vR + 10))
    a("v_lshlrev_b32 v%d, 2, v%d" % (t0, vLANE))
    a("ds_read_b32 v%d, v%d offset:%d" % (t1, vZ, L_USEB))
    a("ds_write_b32 v%d, v%d offset:%d" % (t0, vR, L_QB))
    a("v_mov_b32 v%d, s%d" % (t2, sTAGA))
    a("v_mov_b32 v%d, s%d" % (t3, sTAG))
    a("s_waitcnt lgkmcnt(0)")
    a("v_cmp_ne_u32 vcc, 0, v%d" % t1)
    a("s_nop 1")
    a("v_cndmask_b32 v%d, v%d, v%d, vcc" % (t2, t2, t3))
    a("ds_write_b32 v%d, v%d offset:%d" % (vZ, t2, L_TAG))
    a("ds_write_b32 v%d, v%d offset:%d" % (vZ, vONE, L_QRDY))
    a("L_QD:")
    stamp(8)
    a("v_mov_b32 v%d, s%d" % (vR + 9, sTAG))
    a("v_mov_b32 v%d, s%d" % (vR + 11, sTAG))
    seq = [(vXW + j, vWQ + 4 * j) for j in range(5)]
    def build(idx):
        A = vA0 if idx % 2 == 0 else vA1
        for r in range(4):
            a("v_and_b32 v%d, v%d, v%d" % (A + r, vM + r, seq[idx][0]))
    build(0)
    a("s_waitcnt vmcnt(0) lgkmcnt(0)")
    for idx in range(5):
        if idx + 1 < 5: build(idx + 1)
        else: a("s_nop 1")
        a("v_mfma_f32_16x16x32_bf16 %s, %s, %s, %s" % (vr(vAH), vr(vA0 if idx % 2 == 0 else vA1), vr(seq[idx][1]), "0" if idx == 0 else vr(vAH)))
    a("s_lshl_b32 s%d, s%d, 10" % (sT1, sHT))
    a("s_add_u32 s%d, s%d, 0x%x" % (sT1, sT1, WS_H))
    a("s_mov_b32 exec_hi, 0")
    a("s_nop 4")
    a("ds_write_b128 v%d, %s offset:%d" % (vPW, vr(vAH), U_HP * 512))
    arrive(L_CNT4, U_HP, vR, vZ, vONE, "L_HD")
    a("s_cmp_ge_u32 s%d, 112" % sHT)
    a("s_cbranch_scc1 L_HD")
    a("buffer_store_dwordx4 %s, v%d, %s, s%d offen %s" % (vr(vR + 8), vL16, srd(WS), sT1, st))
    a("L_HD:")
    a("s_setprio 0")
    stamp(6)
    a("s_cmp_eq_u32 s%d, 2" % sROLE)
    a("s_cbranch_scc1 L_FIN")
    a("buffer_load_short_d16_hi v%d, v%d, %s, 0 offen" % (vCONST, vB1o, srd(B1)))
    a("buffer_load_short_d16_hi v%d, v%d, %s, 0 offen offset:32" % (vEP, vB1o, srd(B1)))
    for u in range(2):
        for i in range(4):
            if (u, i) in ((0, 2), (1, 2)): a("s_add_u32 s%d, s%d, 5120" % (sW2o, sW2o))
            if (u, i) == (1, 0): a("s_add_u32 s%d, s%d, %d" % (sW2o, sW2o, 20480 - 5120))
            a("buffer_load_dwordx4 %s, v%d, %s, s%d offen offset:%d %s" % (vr(vW2 + 16 * u + 4 * i), vD, srd(W2), sW2o, (i % 2) * 2560, nt))
    stamp(7)
    a("s_cmp_eq_u32 s%d, 1" % sROLE)
    a("s_cbranch_scc1 L_POLL1")
    lds_wait("L_UW", vZ, L_CNT6, 4, "ds_read_b32 v%d, v%d offset:%d" % (t3, vZ, L_USEB))
    a("v_readfirstlane_b32 s%d, v%d" % (sT0, t3))
    a("s_nop 0")
    a("s_cmp_eq_u32 s%d, 0" % sT0)
    a("s_cbranch_scc1 L_MR")
    a("s_mov_b32 s%d, s%d" % (sTAGA, sTAG))
    a("s_sub_u32 s%d, s%d, 0x%x" % (sGO, sGO, WS_ALT))
    a("s_sub_u32 s%d, s%d, 0x%x" % (sGM, sGM, WS_ALT))
    def oloads():
        a("buffer_load_dwordx4 %s, v%d, %s, s%d offen %s" % (vr(vP0), vGA, srd(WS), sGO, ld))
        a("buffer_load_dwordx4 %s, v%d, %s, s%d offen offset:128 %s" % (vr(vP1), vGA, srd(WS), sGO, ld))
    a("L_MR:")
    spin()
    a("buffer_load_dwordx4 %s, v%d, %s, s%d offen %s" % (vr(vP2), vGB, srd(WS), sGM, ld))
    oloads()
    a("s_waitcnt vmcnt(2)")
    stamp(10)
    tagcheck([vP2], sTAGA)
    a("s_cbranch_vccnz L_MR")
    def allred(v, tmp, op):
        a("s_nop 1")
        a("v_%s_f32_dpp v%d, v%d, v%d row_ror:8 %s" % (op, v, v, v, DPP))
        for sw in ("16", "32"):
            a("v_mov_b32 v%d, v%d" % (tmp, v))
            a("s_nop 1")
            a("v_permlane%s_swap_b32 v%d, v%d" % (sw, v, tmp))
            a("v_%s_f32 v%d, v%d, v%d" % (op, v, v, tmp))
    a("v_mov_b32 v%d, v%d" % (t0, vP2))
    allred(t0, t1, "max")
    a("v_sub_f32 v%d, v%d, v%d" % (t0, vP2, t0))
    a("v_mul_f32 v%d, %s, v%d" % (t0, f32(LOG2E), t0))
    a("v_exp_f32 v%d, v%d" % (vFAC, t0))
    a("s_nop 0")
    a("v_mul_f32 v%d, v%d, v%d" % (t2, vFAC, vP2 + 2))
    allred(t2, t1, "add")
    a("v_rcp_f32 v%d, v%d" % (t2, t2))
    a("s_nop 0")
    a("v_mul_f32 v%d, v%d, v%d" % (vFAC, vFAC, t2))
    a("s_branch L_OC")
    a("L_OR:")
    spin()
    oloads()
    a("L_OC:")
    a("s_waitcnt vmcnt(0)")
    tagcheck([vP0, vP1], sTAGA)
    a("s_cbranch_vccnz L_OR")
    stamp(11)
    for b in (vP0, vP1):
        a("v_mul_f32 v%d, v%d, v%d" % (b, b, vFAC))
        a("v_mul_f32 v%d, v%d, v%d" % (b + 2, b + 2, vFAC))
    def tred2():
        a("s_nop 0")
        a("v_permlane32_swap_b32 v%d, v%d" % (vP0, vP0 + 2))
        a("v_permlane32_swap_b32 v%d, v%d" % (vP1, vP1 + 2))
        a("v_add_f32 v%d, v%d, v%d" % (vP0, vP0, vP0 + 2))
        a("v_add_f32 v%d, v%d, v%d" % (vP1, vP1, vP1 + 2))
        a("v_mov_b32 v%d, v%d" % (vP0 + 2, vP0))
        a("v_mov_b32 v%d, v%d" % (vP1 + 2, vP1))
        a("s_nop 0")
        a("v_permlane16_swap_b32 v%d, v%d" % (vP0, vP0 + 2))
        a("v_permlane16_swap_b32 v%d, v%d" % (vP1, vP1 + 2))
        a("v_add_f32 v%d, v%d, v%d" % (vP0, vP0, vP0 + 2))
        a("v_add_f32 v%d, v%d, v%d" % (vP1, vP1, vP1 + 2))
        a("s_nop 0")
        a("v_add_f32_dpp v%d, v%d, v%d row_ror:8 %s" % (vP0, vP0, vP0, DPP))
        a("v_add_f32_dpp v%d, v%d, v%d row_ror:8 %s" % (vP1, vP1, vP1, DPP))
    tred2()
    a("L_GEMV2:")
    a("v_cvt_pk_bf16_f32 v%d, v%d, v%d" % (vP0, vP0, vP0))
    a("v_cvt_pk_bf16_f32 v%d, v%d, v%d" % (vP1, vP1, vP1))
    a("s_nop 0")
    a("v_mov_b32_dpp v%d, v%d row_ror:4 row_mask:0xa bank_mask:0xf" % (vP0, vP0))
    a("v_mov_b32_dpp v%d, v%d row_ror:4 row_mask:0xa bank_mask:0xf" % (vP1, vP1))
    a("s_nop 0")
    for k in range(8):
        for r in range(4):
            a("v_and_b32_dpp v%d, v%d, v%d row_newbcast:%d %s" % (vPA2 + 4 * k + r, vP0 if k < 4 else vP1, vM + r, k % 4, DPP))
        if k >= 1:
            a("v_mfma_f32_16x16x32_bf16 %s, %s, %s, %s" % (vr(vAQ), vr(vPA2 + 4 * (k - 1)), vr(vW2 + 4 * (k - 1)), "0" if k == 1 else vr(vAQ)))
    a("s_nop 1")
    a("v_mfma_f32_16x16x32_bf16 %s, %s, %s, %s" % (vr(vAQ), vr(vPA2 + 28), vr(vW2 + 28), vr(vAQ)))
    a("s_mov_b32 exec_hi, 0")
    a("s_nop 6")
    a("ds_write_b128 v%d, %s offset:%d" % (vPW, vr(vAQ), U_FP * 512))
    stamp(12)
    arrive(L_CNT7, U_FP, vR, vZ, vONE, "L_EXIT")
    a("buffer_store_dwordx4 %s, v%d, %s, s%d offen %s" % (vr(vR + 8), vFA, srd(WS), sFO, st))
    a("s_branch L_EXIT")
    a("L_POLL1:")
    spin()
    oloads()
    a("s_waitcnt vmcnt(0)")
    tagcheck([vP0, vP1], sTAG)
    a("s_cbranch_vccnz L_POLL1")
    stamp(11)
    tred2()
    k0 = -2.0 * 0.7978845608028654 * LOG2E
    for (b, cst, ta, tb) in ((vP0, vCONST, t0, t1), (vP1, vEP, t2, t3)):
        rbf(b)
        a("v_and_b32 v%d, 0xffff0000, v%d" % (ta, cst))
        a("v_add_f32 v%d, v%d, v%d" % (b, b, ta))
        rbf(b)
        a("v_mul_f32 v%d, v%d, v%d" % (ta, b, b))
        a("v_mov_b32 v%d, %s" % (tb, f32(k0)))
        a("v_fmac_f32 v%d, %s, v%d" % (tb, f32(k0 * 0.044715), ta))
        a("v_mul_f32 v%d, v%d, v%d" % (ta, tb, b))
        a("v_exp_f32 v%d, v%d" % (ta, ta))
        a("s_nop 0")
        a("v_add_f32 v%d, 1.0, v%d" % (ta, ta))
        a("v_rcp_f32 v%d, v%d" % (ta, ta))
        a("s_nop 0")
        a("v_mul_f32 v%d, v%d, v%d" % (b, b, ta))
    a("s_lshl_b32 s%d, s%d, 2" % (sT0, sRHO))
    a("s_add_u32 s%d, s%d, s%d" % (sT0, sT0, sW))
    a("s_cmp_lt_u32 s%d, 54" % sT0)
    a("s_cbranch_scc1 L_GEMV2")
    a("v_mov_b32 v%d, 0" % vP0)
    a("v_mov_b32 v%d, 0" % vP1)
    a("s_branch L_GEMV2")
    a("L_FIN:")
    a("s_cmp_ge_u32 s%d, 80" % sF)
    a("s_cbranch_scc1 L_EXIT")
    a("buffer_load_ushort v%d, v%d, %s, 0 offen" % (vPF, vD, srd(OUT)))
    a("s_mov_b32 exec_lo, 0x0000ffff")
    a("s_mov_b32 exec_hi, 0x0000ffff")
    a("buffer_load_short_d16_hi v%d, v%d, %s, 0 offen" % (vCONST, vD, srd(X)))
    a("s_not_b64 exec, exec")
    a("buffer_load_short_d16_hi v%d, v%d, %s, 0 offen" % (vCONST, vD, srd(B2)))
    a("s_mov_b64 exec, -1")
    a("v_mov_b32 v%d, 0" % vP2)
    a("v_mov_b32 v%d, s%d" % (vP2 + 1, sTAG))
    a("v_mov_b32 v%d, 0" % (vP2 + 2))
    a("v_mov_b32 v%d, s%d" % (vP2 + 3, sTAG))
    a("L_POLL2:")
    spin()
    a("buffer_load_dwordx4 %s, v%d, %s, s%d offen %s" % (vr(vP0), vL16, srd(WS), sGO, ld))
    a("buffer_load_dwordx4 %s, v%d, %s, s%d offen offset:1024 %s" % (vr(vP1), vL16, srd(WS), sGO, ld))
    a("s_mov_b32 exec_hi, 0x00ffffff")
    a("buffer_load_dwordx4 %s, v%d, %s, s%d offen offset:2048 %s" % (vr(vP2), vL16, srd(WS), sGO, ld))
    a("s_mov_b32 exec_hi, -1")
    a("s_waitcnt vmcnt(0)")
    tagcheck([vP0, vP1, vP2], sTAG)
    a("s_cbranch_vccnz L_POLL2")
    stamp(12)
    a("v_add_f32 v%d, v%d, v%d" % (vP0, vP0, vP1))
    a("v_add_f32 v%d, v%d, v%d" % (vP0 + 2, vP0 + 2, vP1 + 2))
    a("v_permlane32_swap_b32 v%d, v%d" % (vP2, vP2 + 2))
    a("v_add_f32 v%d, v%d, v%d" % (vP2, vP2, vP2 + 2))
    a("v_permlane32_swap_b32 v%d, v%d" % (vP0, vP0 + 2))
    a("v_add_f32 v%d, v%d, v%d" % (vP0, vP0, vP0 + 2))
    a("v_and_b32 v%d, 0xffff0000, v%d" % (t2, vCONST))
    a("s_nop 0")
    a("v_permlane16_swap_b32 v%d, v%d" % (vP0, vP2))
    a("v_add_f32 v%d, v%d, v%d" % (vP0, vP0, vP2))
    a("s_nop 1")
    a("v_add_f32_dpp v%d, v%d, v%d row_ror:4 %s" % (vP0, vP0, vP0, DPP))
    a("s_nop 1")
    a("v_add_f32_dpp v%d, v%d, v%d row_ror:8 %s" % (vP0, vP0, vP0, DPP))
    rbf(vP0)
    a("v_add_f32 v%d, v%d, v%d" % (vP0, vP0, t2))
    rbf(vP0)
    a("v_mov_b32 v%d, v%d" % (t1, vP0))
    a("s_nop 1")
    a("v_permlane16_swap_b32 v%d, v%d" % (vP0, t1))
    a("v_add_f32 v%d, v%d, v%d" % (vP0, vP0, t1))
    a("v_cvt_pk_bf16_f32 v%d, v%d, v%d" % (vP0, vP0, vP0))
    a("s_mov_b32 exec_lo, 0xf")
    a("s_mov_b32 exec_hi, 0xf")
    a("buffer_store_short v%d, v%d, %s, 0 offen" % (vP0, vD, srd(OUT)))
    a("s_cmp_lg_u32 s%d, 0" % sF)
    a("s_cbranch_scc1 L_EXIT")
    a("s_mov_b64 exec, 1")
    a("buffer_store_dword v%d, v%d, %s, 0 offen offset:%d" % (vR + 9, vZ, srd(WS), WS_EPOCH))
    a("s_branch L_EXIT")
    a("L_KV2:")
    masks()
    for r in range(16):
        a("v_mov_b32 v%d, 0" % (vAT + r))
    a("s_lshl_b32 s%d, s%d, 3" % (sT1, sH))
    a("s_add_u32 s%d, s%d, s%d" % (sT1, sT1, sSP))
    a("s_lshl_b32 s%d, s%d, 10" % (sQ, sT1))
    a("s_add_u32 s%d, s%d, 0x%x" % (sQ, sQ, WS_O))
    a("s_add_u32 s%d, s%d, 0x%x" % (sW1o, sQ, WS_ALT))
    a("s_lshl_b32 s%d, s%d, 7" % (sW2o, sT1))
    a("s_add_u32 s%d, s%d, 0x%x" % (sW2o, sW2o, WS_ML))
    a("s_add_u32 s%d, s%d, 0x%x" % (sF, sW2o, WS_ALT))
    a("v_mov_b32 v%d, 1" % vE)
    stamp(5)
    lds_wait("L_QW", vD, L_QRDY, 1)
    stamp(6)
    for t in range(4):
        a("s_mov_b32 exec_lo, 0x%08x" % (0x000f000f << (4 * t)))
        a("s_mov_b32 exec_hi, exec_lo")
        a("ds_read_b128 %s, v%d offset:%d" % (vr(vAT + 4 * t), vC, L_QB))
    a("s_mov_b64 exec, -1")
    a("ds_read_b32 v%d, v%d offset:%d" % (vEP, vD, L_TAG))
    a("ds_read_b32 v%d, v%d offset:%d" % (vCONST, vD, L_USEB))
    a("s_waitcnt vmcnt(16) lgkmcnt(2)")
    for L in range(16):
        acc = vS + 4 * (L // 4)
        a("v_mfma_f32_16x16x32_bf16 %s, %s, %s, %s" % (vr(acc), vr(vAT + 4 * (L % 4)), vr(vK + 4 * L), "0" if L % 4 == 0 else vr(acc)))
    sc = [vT + 8, vT + 9, vT + 10, vT + 11]
    for k in range(4):
        for j in range(4):
            if k == 0:
                if j == 2: a("s_nop 1")
                if j == 3: a("s_nop 2")
                a("v_mov_b32_dpp v%d, v%d quad_perm:[0,0,0,0] %s" % (sc[j], vS + 4 * j, DPP))
            else:
                a("v_add_f32_dpp v%d, v%d, v%d quad_perm:[%d,%d,%d,%d] %s" % (sc[j], vS + 4 * j + k, sc[j], k, k, k, k, DPP))
    for rnd in range(2):
        a("v_cvt_pk_bf16_f32 v%d, v%d, v%d" % (t0, sc[0], sc[1]))
        a("v_cvt_pk_bf16_f32 v%d, v%d, v%d" % (t1, sc[2], sc[3]))
        a("v_lshlrev_b32 v%d, 16, v%d" % (sc[0], t0))
        a("v_and_b32 v%d, 0xffff0000, v%d" % (sc[1], t0))
        a("v_lshlrev_b32 v%d, 16, v%d" % (sc[2], t1))
        a("v_and_b32 v%d, 0xffff0000, v%d" % (sc[3], t1))
        if rnd == 0:
            for j in range(4):
                a("v_mul_f32 v%d, %s, v%d" % (sc[j], f32(128 ** -0.5), sc[j]))
    a("v_max_f32 v%d, v%d, v%d" % (t2, sc[0], sc[1]))
    a("v_max3_f32 v%d, v%d, v%d, v%d" % (t2, sc[2], sc[3], t2))
    a("s_mov_b32 exec_lo, 0x11111111")
    a("s_mov_b32 exec_hi, exec_lo")
    a("ds_max_f32 v%d, v%d offset:%d" % (vD, t2, L_MX))
    a("s_mov_b64 exec, 1")
    a("ds_add_u32 v%d, v%d offset:%d" % (vD, vE, L_CNT5))
    a("s_mov_b64 exec, -1")
    vRk = 36
    vMX = vRk + 12
    a("s_waitcnt lgkmcnt(2)")
    for o in (9, 11, 13, 15):
        a("v_mov_b32 v%d, v%d" % (vRk + o, vEP))
    a("v_readfirstlane_b32 s%d, v%d" % (sROLE, vCONST))
    lds_wait("L_MW", vD, L_CNT5, 4, "ds_read_b32 v%d, v%d offset:%d" % (vMX, vD, L_MX))
    stamp(7)
    for j in range(4): a("v_sub_f32 v%d, v%d, v%d" % (sc[j], sc[j], vMX))
    for j in range(4): a("v_mul_f32 v%d, %s, v%d" % (sc[j], f32(LOG2E), sc[j]))
    for j in range(4): a("v_exp_f32 v%d, v%d" % (sc[j], sc[j]))
    a("v_add_f32 v%d, v%d, v%d" % (t2, sc[0], sc[1]))
    a("v_add_f32 v%d, v%d, v%d" % (t1, sc[2], sc[3]))
    for j in range(4): a("v_cvt_pk_bf16_f32 v%d, v%d, v%d" % (sc[j], sc[j], sc[j]))
    a("v_add_f32 v%d, v%d, v%d" % (t2, t2, t1))
    pa = [(aa, i, r) for aa in range(4) for i in range(4) for r in range(4)]
    def pab(n):
        for _ in range(n):
            aa, i, r = pa.pop(0)
            a("v_and_b32_dpp v%d, v%d, v%d row_newbcast:%d %s" % (vK + 16 * aa + 4 * i + r, sc[aa], vM + r, 4 * i, DPP))
    pab(2)
    for ctl in ("row_ror:4 row_mask:0xf", "row_ror:8 row_mask:0xf", "row_bcast:15 row_mask:0xa", "row_bcast:31 row_mask:0xc"):
        a("v_add_f32_dpp v%d, v%d, v%d %s bank_mask:0xf" % (t2, t2, t2, ctl))
        pab(2)
    a("s_lshl_b32 s%d, s%d, 2" % (sT0, sW))
    a("v_mov_b32 v%d, s%d" % (t3, sT0))
    a("s_mov_b32 exec_lo, 0")
    a("s_mov_b32 exec_hi, 0x80000000")
    a("ds_write_b32 v%d, v%d offset:%d" % (t3, t2, L_LS - 16))
    a("ds_add_rtn_u32 v%d, v%d, v%d offset:%d" % (t0, vD, vE, L_CNT2))
    a("s_mov_b64 exec, -1")
    a("ds_read_b128 %s, v%d offset:%d" % (vr(vRk), vD, L_LS))
    pab(len(pa))
    a("s_waitcnt lgkmcnt(0)")
    a("v_readlane_b32 s%d, v%d, 63" % (sT0, t0))
    a("v_pk_add_f32 %s, %s, %s" % (vr(vRk, 2), vr(vRk, 2), vr(vRk + 2, 2)))
    a("s_cmp_lg_u32 s%d, 3" % sT0)
    a("s_cbranch_scc1 L_NOML")
    a("s_mov_b64 exec, 0xff")
    a("v_add_f32 v%d, v%d, v%d" % (vRk + 14, vRk, vRk + 1))
    a("s_cmp_eq_u32 s%d, 0" % sROLE)
    a("s_cbranch_scc0 L_MLB")
    a("buffer_store_dwordx4 %s, v%d, %s, s%d offen" % (vr(vRk + 12), vL16, srd(WS), sF))
    a("s_branch L_MLC")
    a("L_MLB:")
    a("buffer_store_dwordx4 %s, v%d, %s, s%d offen %s" % (vr(vRk + 12), vL16, srd(WS), sW2o, st))
    a("L_MLC:")
    a("s_mov_b64 exec, -1")
    def pv(extra):
        for k in range(16):
            a("s_waitcnt vmcnt(%d)" % (15 - k + extra))
            a("v_mfma_f32_16x16x32_bf16 %s, %s, %s, %s" % (vr(vO), vr(vK + 4 * k), vr(vV + 4 * k), "0" if k == 0 else vr(vO)))
    pv(1)
    a("s_branch L_PVD")
    a("L_NOML:")
    stamp(8)
    pv(0)
    a("L_PVD:")
    a("s_mov_b32 exec_hi, 0")
    a("s_nop 6")
    a("ds_write_b128 v%d, %s offset:%d" % (vPW, vr(vO), U_OP * 512))
    stamp(9)
    arrive(L_CNT6, U_OP, vRk, vD, vE, "L_EXIT")
    a("s_cmp_eq_u32 s%d, 0" % sROLE)
    a("s_cbranch_scc0 L_OB")
    a("buffer_store_dwordx4 %s, v%d, %s, s%d offen" % (vr(vRk + 8), vL16, srd(WS), sW1o))
    a("s_branch L_EXIT")
    a("L_OB:")
    a("buffer_store_dwordx4 %s, v%d, %s, s%d offen %s" % (vr(vRk + 8), vL16, srd(WS), sQ, st))
    a("L_EXIT:")
    if stamps:
        a("s_waitcnt vmcnt(0)")
        stamp(13)
        a("s_waitcnt lgkmcnt(0)")
        a("s_lshl_b32 s%d, s2, 3" % sT0)
        a("s_add_u32 s%d, s%d, s%d" % (sT0, sT0, sW))
        a("s_lshl_b32 s%d, s%d, 7" % (sT0, sT0))
        a("s_add_u32 s%d, s%d, 0x%x" % (sT0, sT0, WS_ST))
        a("s_mov_b64 exec, 1")
        a("v_mov_b32 v1, 0")
        for i in range(16):
            if i < NST:
                a("v_mov_b32 v2, s%d" % (72 + 2 * i)); a("v_mov_b32 v3, s%d" % (73 + 2 * i))
            else:
                a("v_mov_b32 v2, 0"); a("v_mov_b32 v3, 0")
            a("buffer_store_dwordx2 v[2:3], v1, %s, s%d offen offset:%d" % (srd(WS), sT0, i * 8))
            a("s_nop 1")
    a("L_END:")
    a("s_endpgm")
    body = a.text()
    errs = hazard.check(body)
    if errs:
        print("\n".join(errs)); raise SystemExit("hazards")
    return wrap(body, 256, 512, LDS_BYTES, NV, sgpr=102 if stamps else 72)

if __name__ == "__main__":
    V = {"": {}, "s": dict(stamps=True), "_tw": dict(twarm=True), "_w2": dict(w1bit=2), "_w1": dict(w1bit=1)}
    for k, v in V.items():
        open("kf%s.s" % k, "w").write(gen(**v))
```
